```python
import torch

def _softmax(x, axis=-1):
    return torch.softmax(x, dim=axis)
def _gelu(x):
    return torch.nn.functional.gelu(x, approximate="tanh")
def _silu(x):
    return torch.nn.functional.silu(x)
def _sigmoid(x):
    return torch.sigmoid(x)
def _layernorm(x, axis=-1, eps=1e-5):
    m = x.mean(dim=axis, keepdim=True)
    v = x.var(dim=axis, keepdim=True, unbiased=False)
    return (x - m) / torch.sqrt(v + eps)
def _scatter_add(tgt, idx, src, axis=0):
    return tgt.clone().index_add_(axis, idx, src)
def _segment_sum(src, seg, n):
    out = torch.zeros((n,) + src.shape[1:], dtype=src.dtype)
    return out.index_add_(0, seg, src)
def _pad(x, pw):
    flat = tuple(v for pair in reversed(pw) for v in pair)
    return torch.nn.functional.pad(x, flat)

kernel_name = 'concat_heads__ssm_conv_s4__ssm_conv_s5__prompt'

def setup_inputs():

    _w = (lambda a: (lambda t: t.to(torch.bfloat16) if t.is_floating_point() else t)(torch.as_tensor(a)))
    def _A_setup():
        B, L, D, N = 1, 2048, 576, 128
        A_re = -(lambda _x: torch.exp(torch.as_tensor(_x)))((lambda *s: torch.randn(*s, dtype=torch.bfloat16) * 3.2)(D, N))
        A_im = torch.pi * (lambda *s: torch.randn(*s, dtype=torch.bfloat16) * 0.05)(D, N)
        B_re = (lambda *s: torch.randn(*s, dtype=torch.bfloat16) * 0.1)(D, N)
        B_im = (lambda *s: torch.randn(*s, dtype=torch.bfloat16) * 0.1)(D, N)
        C_re = (lambda *s: torch.randn(*s, dtype=torch.bfloat16) * 0.1)(D, N)
        C_im = (lambda *s: torch.randn(*s, dtype=torch.bfloat16) * 0.1)(D, N)
        log_dt = (lambda *s: torch.randn(*s, dtype=torch.bfloat16) * 0.05)(D) * 0.5 - 4.0
        Dskip = (lambda *s: torch.randn(*s, dtype=torch.bfloat16) * 0.05)(D)
        return {
            "u": _w((lambda *s: torch.randn(*s, dtype=torch.bfloat16) * 0.05)(B, L, D)),
            "A_re": _w(A_re),
            "A_im": _w(A_im),
            "B_re": _w(B_re),
            "B_im": _w(B_im),
            "C_re": _w(C_re),
            "C_im": _w(C_im),
            "log_dt": _w(log_dt),
            "Dskip": _w(Dskip),
        }
    _A_in = _A_setup()

    def _B_setup():
        B, S, D = 1, 2048, 576
        P = D
        Lambda_re = -0.5 * (lambda _x: torch.exp(torch.as_tensor(_x)))((lambda *s: torch.randn(*s, dtype=torch.bfloat16) * 0.2)(P))
        Lambda_im = (lambda *s: torch.randn(*s, dtype=torch.bfloat16) * 0.4)(P) * 1.0
        B_re = (lambda *s: torch.randn(*s, dtype=torch.bfloat16) * 0.2)(P, D) * (D ** -0.5)
        B_im = (lambda *s: torch.randn(*s, dtype=torch.bfloat16) * 0.2)(P, D) * (D ** -0.5)
        C_re = (lambda *s: torch.randn(*s, dtype=torch.bfloat16) * 0.2)(D, P) * (P ** -0.5)
        C_im = (lambda *s: torch.randn(*s, dtype=torch.bfloat16) * 0.2)(D, P) * (P ** -0.5)
        log_dt = (lambda *s: torch.randn(*s, dtype=torch.bfloat16) * 0.2)(P) * 0.3 - 2.0
        Dskip = (lambda *s: torch.randn(*s, dtype=torch.bfloat16) * 0.05)(D)
        return {
            "x": _w((lambda *s: torch.randn(*s, dtype=torch.bfloat16) * 0.05)(B, S, D)),
            "Lambda_re": _w(Lambda_re),
            "Lambda_im": _w(Lambda_im),
            "B_re": _w(B_re),
            "B_im": _w(B_im),
            "C_re": _w(C_re),
            "C_im": _w(C_im),
            "log_dt": _w(log_dt),
            "Dskip": _w(Dskip),
        }
    _B_in = _B_setup()

    return {
        "A_u": _A_in["u"],
        "A_A_re": _A_in["A_re"],
        "A_A_im": _A_in["A_im"],
        "A_B_re": _A_in["B_re"],
        "A_B_im": _A_in["B_im"],
        "A_C_re": _A_in["C_re"],
        "A_C_im": _A_in["C_im"],
        "A_log_dt": _A_in["log_dt"],
        "A_Dskip": _A_in["Dskip"],
        "B_x": _B_in["x"],
        "B_Lambda_re": _B_in["Lambda_re"],
        "B_Lambda_im": _B_in["Lambda_im"],
        "B_B_re": _B_in["B_re"],
        "B_B_im": _B_in["B_im"],
        "B_C_re": _B_in["C_re"],
        "B_C_im": _B_in["C_im"],
        "B_log_dt": _B_in["log_dt"],
        "B_Dskip": _B_in["Dskip"],
    }

def reference(A_u, A_A_re, A_A_im, A_B_re, A_B_im, A_C_re, A_C_im, A_log_dt, A_Dskip, B_x, B_Lambda_re, B_Lambda_im, B_B_re, B_B_im, B_C_re, B_C_im, B_log_dt, B_Dskip):
    def _A_ref(u, A_re, A_im, B_re, B_im, C_re, C_im, log_dt, Dskip):
        Bsz, L, D = u.shape
        dt = torch.exp(log_dt)[:, None]
        A = A_re + 1j * A_im
        Bc = B_re + 1j * B_im
        Cc = C_re + 1j * C_im
        logdA = dt * A
        dB = dt * Bc
        l = (lambda x, dt: x.to(dt))(torch.arange(L), A_re.dtype)
        P = torch.exp(logdA[:, :, None] * l[None, None, :])
        K = torch.einsum("dn,dnl,dn->dl", Cc, P, dB).real
        L2 = 2 * L
        Kp = _pad(K, ((0, 0), (0, L)))
        up = (lambda x, *d: x.permute(*d))(u, 0, 2, 1)
        up = _pad(up, ((0, 0), (0, 0), (0, L)))
        Kf = (lambda x, axes=(-2,-1): torch.fft.rfft2(x.float(), dim=axes))(Kp[:, None, :], axes=(-2, -1))
        Uf = (lambda x, axes=(-2,-1): torch.fft.rfft2(x.float(), dim=axes))(up[:, :, None, :], axes=(-2, -1))
        Yf = Uf * Kf[None, :, :, :]
        y = (lambda x, s, axes=(-2,-1): torch.fft.irfft2(x, s=s, dim=axes).to(torch.bfloat16))(Yf, (1, L2), axes=(-2, -1))[:, :, 0, :L]
        y = (lambda x, *d: x.permute(*d))(y, 0, 2, 1) + u * Dskip[None, None, :]
        return y

    def _B_ref(x, Lambda_re, Lambda_im, B_re, B_im, C_re, C_im, log_dt, Dskip):
        Bsz, L, H = x.shape
        Lam = Lambda_re + 1j * Lambda_im
        Bmat = B_re + 1j * B_im
        Cmat = C_re + 1j * C_im
        dt = torch.exp(log_dt)
        Lam_bar = torch.exp(dt * Lam)
        B_bar = ((Lam_bar - 1.0) / Lam)[:, None] * Bmat
        Bu = torch.einsum("bld,pd->blp", x + 0j, B_bar)
        h = torch.zeros_like(Bu[:, 0, :])
        hs = []
        for t in range(L):
            h = Lam_bar[None, :] * h + Bu[:, t, :]
            hs.append(h)
        hseq = torch.stack(hs, 1)
        y = 2.0 * torch.einsum("blp,dp->bld", hseq, Cmat).real + x * Dskip[None, None, :]
        return y

    a = _A_ref(A_u, A_A_re, A_A_im, A_B_re, A_B_im, A_C_re, A_C_im, A_log_dt, A_Dskip)
    b = _B_ref(B_x, B_Lambda_re, B_Lambda_im, B_B_re, B_B_im, B_C_re, B_C_im, B_log_dt, B_Dskip)
    return torch.concatenate([a, b], axis=-1)
```

```python
import re

TRANS = ("v_exp_f32", "v_log_f32", "v_rcp_f32", "v_rsq_f32", "v_sqrt_f32", "v_sin_f32", "v_cos_f32")

def parse_regs(tok):
    tok = tok.strip()
    neg = tok.startswith("-")
    if neg: tok = tok[1:]
    m = re.fullmatch(r"abs\((.*)\)", tok)
    if m: tok = m.group(1)
    m = re.fullmatch(r"([vsa])(\d+)", tok)
    if m: return {(m.group(1), int(m.group(2)))}
    m = re.fullmatch(r"([vsa])\[(\d+):(\d+)\]", tok)
    if m: return {(m.group(1), i) for i in range(int(m.group(2)), int(m.group(3)) + 1)}
    if tok in ("vcc", "vcc_lo", "vcc_hi"): return {("vcc", 0)}
    if tok in ("exec", "exec_lo", "exec_hi"): return {("exec", 0)}
    if tok == "m0": return {("m0", 0)}
    return set()

class Ins:
    __slots__ = ("text", "op", "kind", "wr", "rd", "ws", "passes", "srcc", "srcab", "lds_dma", "stdata", "label", "target")
    def __init__(self, text):
        self.text = text
        t = text.split(";")[0].strip()
        self.label = None; self.target = None
        self.wr = set(); self.rd = set(); self.ws = 1; self.passes = 0
        self.srcc = set(); self.srcab = set(); self.lds_dma = False; self.stdata = set()
        if not t or t.startswith("."):
            self.op = ""; self.kind = "none"; self.ws = 0; return
        if t.endswith(":"):
            self.op = ""; self.kind = "label"; self.ws = 0; self.label = t[:-1]; return
        parts = t.split(None, 1)
        op = parts[0]; self.op = op
        rest = parts[1] if len(parts) > 1 else ""
        ops = []; cur = ""; depth = 0
        for ch in rest:
            if ch in "[(": depth += 1
            if ch in "])": depth -= 1
            if ch == "," and depth == 0: ops.append(cur.strip()); cur = ""
            else: cur += ch
        if cur.strip(): ops.append(cur.strip())
        mods = ""
        if ops:
            sp = ops[-1].split(None, 1)
            ops[-1] = sp[0]; mods = sp[1] if len(sp) > 1 else ""
        R = [parse_regs(o) for o in ops]
        base = re.sub(r"_(e32|e64|dpp|sdwa)$", "", op)
        if op.startswith("v_mfma"):
            self.kind = "mfma"
            self.passes = 8 if "32x32x16" in op else 4 if "16x16x32" in op else 16
            self.wr = R[0]; self.srcab = R[1] | R[2]; self.srcc = R[3]; self.rd = self.srcab | self.srcc
        elif op.startswith("v_"):
            self.kind = "trans" if base in TRANS else "dot" if base.startswith("v_dot") else "valu"
            if base.startswith("v_permlane") :
                self.kind = "permlane"; self.wr = R[0] | R[1]; self.rd = R[0] | R[1]
            elif base in ("v_add_co_u32", "v_sub_co_u32", "v_addc_co_u32"):
                self.wr = R[0] | R[1]; self.rd = set().union(*R[2:])
            else:
                self.wr = R[0]; self.rd = set().union(*R[1:]) if len(R) > 1 else set()
                if base.startswith("v_fmac") or base.startswith("v_pk_fmac") : self.rd |= R[0]
                if base.startswith("v_cmpx"): self.wr |= {("exec", 0)}
                if "UNUSED_PRESERVE" in mods: self.rd |= R[0]
            if base in ("v_readfirstlane_b32", "v_readlane_b32"): self.kind = "readlane"
            if op.endswith("_dpp") or "quad_perm" in mods or "row_" in mods or "wave_" in mods: self.kind = "dpp"
        elif op.startswith("ds_"):
            self.kind = "ds"
            if op.startswith("ds_read") or "permute" in op or "swizzle" in op or "_rtn" in op:
                self.wr = R[0]; self.rd = set().union(*R[1:])
            else:
                self.rd = set().union(*R)
        elif op.startswith("buffer_") or op.startswith("global_"):
            self.kind = "vmem"
            lds = bool(re.search(r"\blds\b", mods)) or "load_lds" in op
            self.lds_dma = lds
            if "load" in op and not lds:
                self.wr = R[0]; self.rd = set().union(*R[1:])
                if "d16" in op: self.rd |= R[0]
            elif op in ("buffer_wbl2", "buffer_inv"):
                pass
            else:
                self.rd = set().union(*R)
                if lds: self.rd |= {("m0", 0)}
                if "store" in op and ("x3" in op or "x4" in op):
                    self.stdata = R[0] if op.startswith("buffer_") else R[1]
        elif op.startswith("s_"):
            self.kind = "salu"
            if op == "s_nop": self.ws = int(ops[0], 0) + 1
            elif op.startswith("s_cbranch") or op == "s_branch":
                self.kind = "branch"; self.target = ops[0]
            elif op.startswith("s_cmp") or op.startswith("s_bitcmp") or op in ("s_waitcnt", "s_barrier", "s_endpgm", "s_sleep", "s_setprio"):
                self.rd = set().union(*R) if R else set()
            else:
                self.wr = R[0] if R else set(); self.rd = set().union(*R[1:]) if len(R) > 1 else set()
                if "saveexec" in op: self.wr |= {("exec", 0)}
        else:
            raise ValueError("unknown instr " + text)

VALU_KINDS = ("valu", "trans", "dot", "permlane", "readlane", "dpp")
def vregs(s): return {r for r in s if r[0] in "va"}
def sregs(s): return {r for r in s if r[0] in ("s", "vcc")}

def need(p, c):
    n = 0
    pv = p.kind in VALU_KINDS; cv = c.kind in VALU_KINDS
    if pv:
        w = vregs(p.wr); ws_ = sregs(p.wr)
        if c.kind == "mfma" and w & c.rd: n = max(n, 2)
        if p.kind == "trans" and cv and c.kind != "trans" and w & c.rd: n = max(n, 1)
        if p.kind == "trans" and c.kind == "trans" and w & c.rd: n = max(n, 1)
        if p.kind == "dot" and (w & (c.rd | c.wr)) : n = max(n, 3)
        if c.kind == "permlane" and w & c.rd: n = max(n, 2)
        if c.kind == "dpp" and w & c.rd: n = max(n, 2)
        if c.kind == "readlane" and w & c.rd: n = max(n, 1)
        if "sdwa" in p.op or "op_sel" in p.text and not p.op.startswith("v_pk"):
            if cv and w & (c.rd | c.wr): n = max(n, 1)
        if ws_ & c.rd:
            if c.kind == "vmem": n = max(n, 5)
            elif c.kind == "readlane": n = max(n, 4)
            elif cv: n = max(n, 2)
            elif c.kind in ("salu", "branch"): n = max(n, 1)
        if ("vcc", 0) in p.wr and c.kind == "branch" and "vcc" in c.op: n = max(n, 5)
        if ("exec", 0) in p.wr:
            if c.kind == "mfma" or c.kind == "readlane" or c.kind == "permlane": n = max(n, 4)
            if c.kind == "dpp": n = max(n, 5)
    if p.kind == "mfma":
        P = p.passes
        d = p.wr
        big = {4: 8, 8: 12, 16: 20}[P]
        if c.kind == "mfma":
            if d & c.srcab: n = max(n, big)
            if d & c.srcc:
                if not (c.srcc == d and c.passes == P): n = max(n, {4: 6, 8: 10, 16: 18}[P])
            if d & c.wr and not (c.wr == d and c.srcc == d and c.passes == P):
                n = max(n, {4: 6, 8: 10, 16: 18}[P])
        elif d & (c.rd | c.wr): n = max(n, big)
        if cv and p.srcc & c.wr: n = max(n, {4: 3, 8: 7, 16: 15}[P])
    if p.kind == "vmem" and p.stdata and (p.stdata & c.wr): n = max(n, 2)
    if p.kind == "salu" and ("m0", 0) in p.wr and c.lds_dma: n = max(n, 1)
    if p.kind == "salu" and ("exec", 0) in p.wr and c.kind == "dpp": n = max(n, 0)
    return n

class Asm:
    def __init__(self):
        self.ins = []
        self.vm = []
        self.uid = 0
    def __call__(self, text):
        for line in text.split("\n"):
            line = line.strip()
            if line: self.ins.append(Ins(line))
    def label(self, name): self(name + ":")
    def newlabel(self, p="L"):
        self.uid += 1; return f"{p}_{self.uid}"
    def vmem(self, text, tag, optional=False):
        self(text); self.vm.append((tag, optional))
    def wait_vm(self, tag, extra=""):
        idx = max(i for i, (t, o) in enumerate(self.vm) if t == tag)
        n = sum(1 for (t, o) in self.vm[idx + 1:] if not o)
        n = min(n, 63)
        self(f"s_waitcnt vmcnt({n}){extra}")
    def vm_reset(self): self.vm = []
    def finalize(self):
        out = []
        LOOK = 24
        def dist_fix(hist, c):
            d = 0; req = 0
            for p in reversed(hist):
                if p.ws == 0: continue
                r = need(p, c) - d
                if r > req: req = r
                d += p.ws
                if d >= LOOK: break
            return req
        for c in self.ins:
            if c.ws:
                r = dist_fix(out, c)
                while r > 0:
                    k = min(r, 16); out.append(Ins(f"s_nop {k-1}")); r -= k
            out.append(c)
        pos = {c.label: i for i, c in enumerate(out) if c.label}
        for i, b in enumerate(out):
            if b.kind == "branch" and b.target in pos:
                hist = out[max(0, i - 40): i + 1]
                j = pos[b.target]; d = 0; h = list(hist)
                while j < len(out) and d < LOOK:
                    c = out[j]
                    if c.ws:
                        r = dist_fix(h, c)
                        if r > 0: raise RuntimeError(f"hazard across branch '{b.text}' -> '{c.text}' needs {r} more")
                        d += c.ws
                        if c.op in ("s_branch", "s_endpgm"): break
                    h.append(c); j += 1
        self.out = out
        return "\n".join(("" if c.kind == "label" else "    ") + c.text for c in out)
```

```python
import sys, os
sys.path.insert(0, os.path.dirname(os.path.abspath(__file__)))
from asmlib import *

NAME = "concat_heads__ssm_conv_s4__ssm_conv_s5__prompt"
KN = NAME + "_kernel"

class Cfg:
    stamps = False
    flag_stride = 4
    spin_max = 200000
    np_kb = 32
    prefetch = True
    l2pf = True
    samexcd = True
    out_flags = ''

NB, NA = 144, 96
WS_AGG, WS_FLG, WS_XI, WS_H, WS_STAMP = 0x1000, 0x40000, 0x60000, 0x100000, 0x800000
WS_SIZE = 0x900000
XSZ, BSZ, OUTSZ = 2359296, 663552, 9437184
LDS_TOTAL = 163840
LOG2E = 0x3fb8aa3b
INV2PI = "0.15915494"

pAu, pAre, pAim, pABre, pABim, pACre, pACim, pAdt, pAD, pX, pLre, pLim, pBre, pBim, pCre, pCim, pBdt, pBD, pOut, pDbg, pWs = [16 + 2 * i for i in range(21)]
def sp(p): return f"s[{p}:{p+1}]"
def vr(a, n): return f"v[{a}:{a+n-1}]"

def cmul(a, dst, x, y):
    a(f"v_pk_mul_f32 {vr(dst,2)}, {vr(x,2)}, {vr(y,2)} op_sel:[0,0] op_sel_hi:[0,1]")
    a(f"v_pk_fma_f32 {vr(dst,2)}, {vr(x,2)}, {vr(y,2)}, {vr(dst,2)} op_sel:[1,1,0] op_sel_hi:[1,0,1] neg_lo:[0,1,0]")
def cfma(a, dst, x, y):
    a(f"v_pk_fma_f32 {vr(dst,2)}, {vr(x,2)}, {vr(y,2)}, {vr(dst,2)} op_sel:[0,0,0] op_sel_hi:[0,1,1]")
    a(f"v_pk_fma_f32 {vr(dst,2)}, {vr(x,2)}, {vr(y,2)}, {vr(dst,2)} op_sel:[1,1,0] op_sel_hi:[1,0,1] neg_lo:[0,1,0]")
def cexp(a, dst, va, vb, scale, t0, t1):
    if scale is None:
        a(f"v_exp_f32 v{t0}, v{va}"); a(f"v_fract_f32 v{t1}, v{vb}")
    else:
        a(f"v_mul_f32 v{t0}, {scale}, v{va}"); a(f"v_mul_f32 v{t1}, {scale}, v{vb}")
        a(f"v_exp_f32 v{t0}, v{t0}"); a(f"v_fract_f32 v{t1}, v{t1}")
    a(f"v_cos_f32 v{dst}, v{t1}"); a(f"v_sin_f32 v{dst+1}, v{t1}")
    a(f"v_mul_f32 v{dst}, v{t0}, v{dst}"); a(f"v_mul_f32 v{dst+1}, v{t0}, v{dst+1}")
def f2u(x):
    import struct
    return "0x%08x" % struct.unpack("<I", struct.pack("<f", x))[0]
def srd(a, s, p, size):
    a(f"s_mov_b32 s{s}, s{p}"); a(f"s_mov_b32 s{s+1}, s{p+1}"); a(f"s_mov_b32 s{s+2}, {size}"); a(f"s_mov_b32 s{s+3}, 0x20000")

class Gen:
    def __init__(self, cfg):
        self.c = cfg; self.a = Asm(); self.nst = 0
    def stamp(self, k):
        if self.c.stamps: self.a(f"s_memrealtime s[{84+2*k}:{85+2*k}]")
    def store_stamps(self, n, sWS):
        if not self.c.stamps: return
        a = self.a
        a("s_waitcnt lgkmcnt(0)")
        a("s_lshl_b32 s58, s2, 3"); a("s_add_u32 s58, s58, s3"); a("s_lshl_b32 s58, s58, 6"); a(f"s_add_u32 s58, s58, {WS_STAMP}")
        a("s_mov_b64 exec, 1")
        a("v_mov_b32 v2, 0")
        for k in range(n):
            a(f"v_mov_b32 v3, s{84+2*k}")
            a(f"buffer_store_dword v3, v2, s[{sWS}:{sWS+3}], s58 offen offset:{4*k}")
        a("s_mov_b64 exec, -1")

    def prologue(self):
        a, c = self.a, self.c
        self.stamp(0)
        a("s_load_dwordx16 s[16:31], s[0:1], 0")
        a("s_load_dwordx16 s[32:47], s[0:1], 64")
        a("s_load_dwordx8 s[48:55], s[0:1], 128")
        a("s_load_dwordx2 s[56:57], s[0:1], 160")
        a(f"s_cmp_ge_u32 s2, {NB+NA}")
        a("s_cbranch_scc1 L_exit")
        a("v_lshrrev_b32 v2, 6, v0")
        a("v_and_b32 v1, 63, v0")
        a("v_readfirstlane_b32 s3, v2")
        a("s_and_b32 s4, s2, 7")
        a("s_lshr_b32 s5, s2, 3")
        if c.prefetch:
            a("s_getpc_b64 s[6:7]")
            a.label("L_pc")
            a("s_lshl_b32 s8, s5, 3"); a("s_add_u32 s8, s8, s3"); a(f"s_and_b32 s8, s8, {c.np_kb-1}"); a("s_lshl_b32 s8, s8, 10")
            a(f"s_sub_u32 s6, s6, L_pc-{KN}"); a("s_subb_u32 s7, s7, 0")
            a("s_add_u32 s6, s6, s8"); a("s_addc_u32 s7, s7, 0")
            a("v_lshlrev_b32 v3, 4, v1")
            a.vmem("global_load_dwordx4 v[252:255], v3, s[6:7]", "pf")
        a(f"s_cmp_ge_u32 s2, {NB}")
        a("s_cbranch_scc1 L_roleA")

    def pf_xb(self, t0, t1, vt, vd):
        a = self.a
        L = a.newlabel("L_nopf")
        a("s_cmp_eq_u32 s5, 29"); a(f"s_cbranch_scc1 {L}")
        a(f"s_sub_u32 s{t0}, s5, 5"); a(f"s_sub_u32 s{t1}, s5, 17")
        a("s_cmp_lt_u32 s5, 17")
        a(f"s_cselect_b32 s{t0}, s{t0}, s{t1}"); a(f"s_cselect_b32 s6, s{pBre}, s{pBim}"); a(f"s_cselect_b32 s7, s{pBre+1}, s{pBim+1}")
        a(f"s_mul_i32 s{t0}, s{t0}, 48")
        a(f"s_mul_i32 s{t1}, s5, 52"); a("s_lshl_b32 s59, s4, 8"); a(f"s_add_u32 s{t1}, s{t1}, s59")
        a("s_cmp_lt_u32 s5, 5")
        a(f"s_cselect_b32 s{t0}, s{t1}, s{t0}"); a(f"s_cselect_b32 s6, s{pX}, s6"); a(f"s_cselect_b32 s7, s{pX+1}, s7")
        a("s_mov_b32 exec_hi, 0xffff")
        a("s_cmp_lt_u32 s5, 4"); a("s_cselect_b32 exec_hi, 0xfffff, exec_hi")
        a(f"s_mul_i32 s{t0}, s{t0}, 1152"); a(f"s_lshl_b32 s{t1}, s3, 7"); a(f"s_add_u32 s{t0}, s{t0}, s{t1}"); a(f"s_add_u32 s{t0}, s{t0}, 128")
        a(f"v_mul_u32_u24 v{vt}, 1152, v1"); a(f"v_add_u32 v{vt}, s{t0}, v{vt}")
        a.vmem(f"global_load_dword v{vd}, v{vt}, s[6:7]", "pf2", optional=True)
        a("s_mov_b32 exec_hi, -1")
        a.label(L)

    def roleB(self):
        a, c = self.a, self.c
        RING, CF, TILE = 4096, 4096, 126976
        sC, sJ, sWM, sWN = 8, 9, 10, 11
        sD, sQ, sWL = 60, 64, 68
        sXS, sOS, sWS = 72, 76, 80
        sTAG, sCNT, sT0, sT1 = 12, 13, 14, 15
        sXCC, sXI = 69, 70
        vDe, vDo = 4, 5
        vA, vA2, vB, vB2 = 16, 20, 24, 28
        ACC2, R_, I_, FR, CS = 32, 64, 80, 96, 144
        vLam, vNLi, vL16, vCo, vMu, vL256, vN256, vLseg, vPre, vCar = 216, 218, 220, 222, 224, 226, 228, 230, 232, 234
        vZa, vZb = 236, 237
        vP0 = 240
        a("s_cmp_ge_u32 s5, 9")
        a(f"s_cselect_b32 s{sT0}, 1, 0")
        a(f"s_lshl_b32 s{sC}, s4, 1"); a(f"s_add_u32 s{sC}, s{sC}, s{sT0}")
        a(f"s_mul_i32 s{sT0}, s{sT0}, 9"); a(f"s_sub_u32 s{sJ}, s5, s{sT0}")
        a(f"s_and_b32 s{sWM}, s3, 3"); a(f"s_lshr_b32 s{sWN}, s3, 2")
        a(f"s_lshl_b32 s{sT0}, s{sC}, 7"); a(f"s_lshl_b32 s{sT1}, s3, 5"); a(f"s_add_u32 s{sT0}, s{sT0}, s{sT1}")
        a(f"s_and_b32 s{sT1}, s3, 1"); a(f"s_lshl_b32 s{sT1}, s{sT1}, 5"); a(f"s_lshl_b32 s58, s{sJ}, 6"); a(f"s_add_u32 s{sT1}, s{sT1}, s58")
        a("s_cmp_lt_u32 s3, 4")
        a(f"s_cselect_b32 s{sT0}, s{sT0}, s{sT1}")
        a(f"s_movk_i32 s{sT1}, 9216"); a(f"s_cselect_b32 s{sT1}, 4608, s{sT1}")
        a("s_cselect_b64 vcc, -1, 0")
        a(f"s_mul_i32 s{sQ}, s{sT0}, 1152")
        for q in range(1, 4): a(f"s_add_u32 s{sQ+q}, s{sQ+q-1}, s{sT1}")
        a(f"s_lshl_b32 s{sWL}, s3, 12")
        a("v_lshrrev_b32 v2, 3, v1")
        a("v_and_b32 v3, 3, v2"); a("v_lshrrev_b32 v6, 5, v1"); a("v_lshl_add_u32 v3, v6, 4, v3")
        a("v_cndmask_b32 v2, v2, v3, vcc")
        a("v_mul_u32_u24 v2, 1152, v2")
        a("v_lshrrev_b32 v3, 4, v1"); a("v_xor_b32 v3, v3, v1"); a("v_and_b32 v3, 7, v3")
        a(f"v_lshl_add_u32 v{vDe}, v3, 4, v2"); a(f"v_xor_b32 v{vDo}, 64, v{vDe}")
        a(f"s_lshl_b32 s{sT1}, s{sWN}, 5"); a(f"s_add_u32 s58, s58, s{sT1}")
        a("v_and_b32 v7, 31, v1"); a("v_add_u32 v8, s58, v7"); a("v_lshlrev_b32 v8, 1, v8")
        a("s_waitcnt lgkmcnt(0)")
        a("s_cmp_lt_u32 s3, 6")
        a(f"s_cselect_b32 s{sD}, s{pBre}, s{pBim}"); a(f"s_cselect_b32 s{sD+1}, s{pBre+1}, s{pBim+1}")
        a("s_cmp_lt_u32 s3, 4")
        a(f"s_cselect_b32 s{sD}, s{pX}, s{sD}"); a(f"s_cselect_b32 s{sD+1}, s{pX+1}, s{sD+1}")
        a(f"s_mov_b32 s{sD+2}, {BSZ}"); a(f"s_cselect_b32 s{sD+2}, {XSZ}, s{sD+2}")
        a(f"s_mov_b32 s{sD+3}, 0x20000")
        def dma(s):
            for q in range(4):
                const = RING + (s % 4) * 32768 + q * 1024 - 128 * s
                a(f"s_add_u32 m0, s{sWL}, {const}")
                a.vmem(f"buffer_load_dwordx4 v{vDo if q & 1 else vDe}, s[{sD}:{sD+3}], s{sQ+q} offen offset:{128*s} lds", f"st{s}")
        dma(0)
        if c.l2pf: self.pf_xb(sT0, sT1, 2, 251)
        a.vmem(f"global_load_ushort v{vP0}, v8, {sp(pLre)}", "par")
        a.vmem(f"global_load_ushort v{vP0+1}, v8, {sp(pLim)}", "par")
        a.vmem(f"global_load_ushort v{vP0+2}, v8, {sp(pBdt)}", "par")
        if c.l2pf: a("s_barrier")
        for s in (1, 2, 3): dma(s)
        self.stamp(1)
        srd(a, sXS, pX, XSZ); srd(a, sOS, pOut, OUTSZ); srd(a, sWS, pWs, WS_SIZE)
        a(f"s_lshl_b32 s{sT0}, s{sJ}, 7"); a(f"v_lshl_add_u32 v9, v7, 1, s{sT0}")
        a.vmem(f"global_load_ushort v{vP0+3}, v9, {sp(pBD)}", "par2")
        a.vmem(f"global_load_ushort v{vP0+4}, v9, {sp(pBD)} offset:64", "par2")
        a("v_lshrrev_b32 v2, 1, v7"); a("v_and_b32 v2, 7, v2"); a("v_xor_b32 v2, v2, v6"); a("v_lshlrev_b32 v2, 4, v2")
        a("v_lshl_add_u32 v2, v7, 7, v2")
        a(f"s_lshl_b32 s{sT0}, s{sWM}, 12"); a(f"s_lshl_b32 s{sT1}, s{sWN}, 12"); a(f"s_add_u32 s{sT1}, s{sT1}, 16384")
        for ks in range(4):
            a(f"v_xor_b32 v3, {32*ks}, v2")
            a(f"v_add_u32 v{vA+ks}, s{sT0}, v3"); a(f"v_add_u32 v{vB+ks}, s{sT1}, v3")
            a(f"v_add_u32 v{vA2+ks}, 0x10000, v{vA+ks}"); a(f"v_add_u32 v{vB2+ks}, 0x10000, v{vB+ks}")

        def params():
            a.wait_vm("par")
            a(f"v_lshlrev_b32 v{vP0}, 16, v{vP0}"); a(f"v_lshlrev_b32 v{vP0+1}, 16, v{vP0+1}"); a(f"v_lshlrev_b32 v{vP0+2}, 16, v{vP0+2}")
            a(f"v_mul_f32 v10, {LOG2E}, v{vP0+2}"); a("v_exp_f32 v10, v10")
            a("v_cvt_pk_bf16_f32 v10, v10, v10"); a("v_lshlrev_b32 v10, 16, v10")
            a(f"v_mul_f32 v{vZa}, v10, v{vP0}"); a(f"v_mul_f32 v{vZb}, v10, v{vP0+1}")
            a(f"v_mul_f32 v{vZa}, {LOG2E}, v{vZa}"); a(f"v_mul_f32 v{vZb}, {INV2PI}, v{vZb}")
            cexp(a, vLam, vZa, vZb, None, 10, 11)
            a(f"v_sub_f32 v{vNLi}, 0, v{vLam+1}")
            cexp(a, vL16, vZa, vZb, f2u(16.0), 10, 11)
            cexp(a, vL256, vZa, vZb, f2u(256.0), 10, 11)
            a(f"v_sub_f32 v{vN256}, 0, v{vL256+1}")
            a("v_cvt_f32_u32 v12, v6"); a(f"v_mul_f32 v13, {f2u(128.0)}, v12")
            cexp(a, vMu, vZa, vZb, "v13", 10, 11)
            a(f"s_lshl_b32 s{sT0}, s{sWM}, 1"); a(f"v_add_u32 v13, s{sT0}, v6"); a("v_cvt_f32_u32 v13, v13"); a(f"v_mul_f32 v13, {f2u(16.0)}, v13")
            cexp(a, vLseg, vZa, vZb, "v13", 10, 11)
            a(f"v_mul_f32 v10, v{vP0}, v{vP0}"); a(f"v_fmac_f32 v10, v{vP0+1}, v{vP0+1}"); a("v_rcp_f32 v10, v10")
            a(f"v_add_f32 v11, -1.0, v{vLam}")
            a(f"v_mul_f32 v12, v11, v{vP0}"); a(f"v_fmac_f32 v12, v{vLam+1}, v{vP0+1}")
            a(f"v_mul_f32 v13, v{vLam+1}, v{vP0}"); a(f"v_fma_f32 v13, -v11, v{vP0+1}, v13")
            a("v_add_f32 v10, v10, v10")
            a(f"v_mul_f32 v{vCo}, v12, v10"); a(f"v_mul_f32 v{vCo+1}, v13, v10")

        def cloads():
            a(f"s_lshl_b32 s{sT0}, s{sJ}, 6"); a(f"s_lshl_b32 s{sT1}, s3, 3"); a(f"s_add_u32 s{sT0}, s{sT0}, s{sT1}")
            a("v_lshrrev_b32 v2, 3, v1"); a(f"v_add_u32 v2, s{sT0}, v2"); a("v_mul_u32_u24 v2, 1152, v2")
            a("v_and_b32 v3, 7, v1"); a("v_lshl_add_u32 v14, v3, 4, v2")
            for cg in range(9):
                a.vmem(f"global_load_dwordx4 {vr(CS+8*cg,4)}, v14, {sp(pCre)} offset:{128*cg}", f"c{cg}")
                a.vmem(f"global_load_dwordx4 {vr(CS+8*cg+4,4)}, v14, {sp(pCim)} offset:{128*cg}", f"c{cg}")
        def xloads():
            L = a.newlabel("L_nox")
            a(f"s_cmp_lg_u32 s{sWN}, 0"); a(f"s_cbranch_scc1 {L}")
            a(f"s_lshl_b32 s{sT0}, s{sC}, 7"); a(f"s_lshl_b32 s{sT1}, s{sWM}, 5"); a(f"s_add_u32 s{sT0}, s{sT0}, s{sT1}"); a(f"s_mul_i32 s{sT0}, s{sT0}, 1152")
            a("v_mul_u32_u24 v2, 4608, v6"); a("v_add_u32 v15, v2, v9")
            for r in range(16):
                row = (r & 3) + 8 * (r >> 2)
                if (r & 3) == 0: a(f"s_add_u32 s{sT1}, s{sT0}, {8*(r>>2)*1152}")
                for dt in range(2):
                    a.vmem(f"buffer_load_ushort v{ACC2+16*dt+r}, v15, s[{sXS}:{sXS+3}], s{sT1} offen offset:{(r&3)*1152+64*dt}", "xe", optional=True)
            a.label(L)

        for s in range(9):
            a.wait_vm(f"st{s}")
            a("s_barrier")
            if 1 <= s <= 5: dma(s + 3)
            if s == 5:
                xloads()
                a("v_mov_b32 v2, 0")
                a.vmem(f"global_load_dword v{vP0+5}, v2, {sp(pDbg)} sc1", "nonce")
                cloads()
            hi = (s % 4) >= 2
            off = RING + (s & 1) * 32768
            A_, B_ = (vA2, vB2) if hi else (vA, vB)
            for ks in range(4):
                a(f"ds_read_b128 {vr(FR+12*ks,4)}, v{A_+ks} offset:{off}")
                a(f"ds_read_b128 {vr(FR+12*ks+4,4)}, v{B_+ks} offset:{off}")
                a(f"ds_read_b128 {vr(FR+12*ks+8,4)}, v{B_+ks} offset:{off+8192}")
            for ks in range(4):
                a(f"s_waitcnt lgkmcnt({9-3*ks+1})")
                cR = "0" if (s == 0 and ks == 0) else vr(R_, 16)
                cI = "0" if (s == 0 and ks == 0) else vr(I_, 16)
                a(f"v_mfma_f32_32x32x16_bf16 {vr(R_,16)}, {vr(FR+12*ks,4)}, {vr(FR+12*ks+4,4)}, {cR}")
                a(f"s_waitcnt lgkmcnt({9-3*ks})")
                a(f"v_mfma_f32_32x32x16_bf16 {vr(I_,16)}, {vr(FR+12*ks,4)}, {vr(FR+12*ks+8,4)}, {cI}")
            if s == 0:
                self.stamp(2)
                params()
        self.stamp(3)
        for r in range(1, 16):
            a(f"v_fmac_f32 v{R_+r}, v{vLam}, v{R_+r-1}"); a(f"v_fmac_f32 v{I_+r}, v{vLam}, v{I_+r-1}")
            a(f"v_fmac_f32 v{R_+r}, v{vNLi}, v{I_+r-1}"); a(f"v_fmac_f32 v{I_+r}, v{vLam+1}, v{R_+r-1}")
        a(f"s_lshl_b32 s{sT0}, s{sWN}, 8"); a(f"v_lshl_add_u32 v10, v7, 3, s{sT0}")
        a(f"s_lshl_b32 s{sT0}, s{sWM}, 10"); a(f"v_lshl_add_u32 v11, v6, 9, v10"); a(f"v_add_u32 v11, s{sT0}, v11")
        a(f"v_mov_b32 v12, v{R_+15}"); a(f"v_mov_b32 v13, v{I_+15}")
        a("ds_write_b64 v11, v[12:13]")
        a("s_waitcnt lgkmcnt(0)")
        a("s_barrier")
        EX = FR
        for s in range(8): a(f"ds_read_b64 {vr(EX+2*s,2)}, v10 offset:{512*s}")
        a.wait_vm("nonce")
        a(f"v_readfirstlane_b32 s{sTAG}, v{vP0+5}")
        Lok, Lsp = a.newlabel("L_tagok"), a.newlabel("L_tagspin")
        a(f"s_cmp_lg_u32 s{sTAG}, 0"); a(f"s_cbranch_scc1 {Lok}")
        a(f"s_mov_b32 s{sCNT}, {c.spin_max}")
        a("v_mov_b32 v2, 0")
        a.label(Lsp)
        a("s_sleep 1")
        a(f"global_load_dword v{vP0+5}, v2, {sp(pDbg)} sc1")
        a("s_waitcnt vmcnt(0)")
        a(f"v_readfirstlane_b32 s{sTAG}, v{vP0+5}")
        a(f"s_sub_u32 s{sCNT}, s{sCNT}, 1"); a(f"s_cbranch_scc1 {Lok}")
        a(f"s_cmp_eq_u32 s{sTAG}, 0"); a(f"s_cbranch_scc1 {Lsp}")
        a.label(Lok)
        for s in range(1, 8):
            a(f"s_waitcnt lgkmcnt({7-s})")
            cfma(a, EX + 2 * s, EX + 2 * (s - 1), vL16)
        Lnp = a.newlabel("L_nopub")
        a(f"s_lshl_b32 s{sT0}, s{sJ}, 4"); a(f"s_add_u32 s{sT0}, s{sT0}, s{sC}"); a(f"s_lshl_b32 s59, s{sT0}, 10"); a(f"s_add_u32 s59, s59, {WS_AGG}")
        a("v_lshlrev_b32 v11, 1, v10")
        if c.samexcd:
            a(f"s_getreg_b32 s{sXCC}, hwreg(HW_REG_XCC_ID, 0, 4)")
            a(f"s_lshl_b32 s{sXI}, s{sC}, 7"); a(f"s_add_u32 s{sXI}, s{sXI}, {WS_XI}")
            a("v_min_u32 v249, 8, v1"); a("v_lshlrev_b32 v249, 3, v249")
        a(f"s_cmp_lg_u32 s{sWM}, 0"); a(f"s_cbranch_scc1 {Lnp}")
        a(f"v_mov_b32 v12, v{EX+14}"); a(f"v_mov_b32 v13, s{sTAG}"); a(f"v_mov_b32 v14, v{EX+15}"); a(f"v_mov_b32 v15, s{sTAG}")
        a("s_mov_b32 exec_hi, 0")
        a.vmem(f"buffer_store_dwordx4 v[12:15], v11, s[{sWS}:{sWS+3}], s59 offen sc1", "pub", optional=True)
        if c.samexcd:
            a(f"s_cmp_lg_u32 s{sWN}, 0"); a(f"s_cbranch_scc1 {Lnp}x")
            a("s_mov_b64 exec, 1")
            a(f"s_lshl_b32 s{sT0}, s{sJ}, 3"); a(f"v_mov_b32 v2, s{sT0}"); a(f"v_mov_b32 v12, s{sXCC}")
            a.vmem(f"buffer_store_dwordx2 v[12:13], v2, s[{sWS}:{sWS+3}], s{sXI} offen sc1", "pub", optional=True)
            a.label(Lnp + "x")
        a("s_mov_b64 exec, -1")
        a.label(Lnp)
        self.stamp(4)
        a("s_mov_b32 vcc_lo, 0"); a("s_mov_b32 vcc_hi, -1")
        Ld = a.newlabel("L_pre")
        for wm in range(4):
            Ln = a.newlabel("L_pre")
            if wm < 3: a(f"s_cmp_lg_u32 s{sWM}, {wm}"); a(f"s_cbranch_scc1 {Ln}")
            for k in range(2):
                lo = "0" if wm == 0 else f"v{EX+2*(2*wm-1)+k}"
                a(f"v_cndmask_b32 v{vPre+k}, {lo}, v{EX+2*(2*wm)+k}, vcc")
            if wm < 3: a(f"s_branch {Ld}"); a.label(Ln)
        a.label(Ld)
        G = FR
        Qr, Qi = 128, 16
        a("v_and_b32 v2, 7, v1"); a("v_mul_u32_u24 v2, 2064, v2")
        a("v_lshrrev_b32 v3, 3, v1"); a("v_lshl_add_u32 v2, v3, 4, v2")
        a(f"s_lshl_b32 s{sT0}, s{sWN}, 10"); a(f"s_lshl_b32 s{sT1}, s{sWM}, 7"); a(f"s_add_u32 s{sT0}, s{sT0}, s{sT1}"); a(f"s_add_u32 s{sT0}, s{sT0}, {CF}")
        a(f"v_add_u32 v246, s{sT0}, v2"); a(f"v_add_u32 v247, {3*16512}, v246"); a(f"v_add_u32 v248, {6*16512}, v246")
        a("s_mov_b32 s6, 0x05040100"); a("s_mov_b32 s7, 0x07060302")
        def cwrite(cg):
            a.wait_vm(f"c{cg}")
            Rr, Ii = CS + 8 * cg, CS + 8 * cg + 4
            tmp = [128 + k for k in range(8)] if cg & 1 else [136 + k for k in range(8)]
            for q in range(4):
                a(f"v_perm_b32 v{tmp[2*q]}, v{Ii+q}, v{Rr+q}, s6")
                a(f"v_perm_b32 v{tmp[2*q+1]}, v{Ii+q}, v{Rr+q}, s7")
            base = 246 + cg // 3; off = (cg % 3) * 16512
            a(f"ds_write_b128 v{base}, {vr(tmp[0],4)} offset:{off}")
            a(f"ds_write_b128 v{base}, {vr(tmp[4],4)} offset:{off+512}")
        for cg in range(7): cwrite(cg)
        for r in range(0, 16, 2):
            a(f"v_pk_mul_f32 v[12:13], {vr(R_+r,2)}, {vr(vCo,2)} op_sel:[0,0] op_sel_hi:[1,0]")
            a(f"v_pk_fma_f32 v[12:13], {vr(I_+r,2)}, {vr(vCo,2)}, v[12:13] op_sel:[0,1,0] op_sel_hi:[1,1,1] neg_lo:[0,1,0] neg_hi:[0,1,0]")
            a(f"v_pk_mul_f32 {vr(I_+r,2)}, {vr(I_+r,2)}, {vr(vCo,2)} op_sel:[0,0] op_sel_hi:[1,0]")
            a(f"v_pk_fma_f32 {vr(I_+r,2)}, {vr(R_+r,2)}, {vr(vCo,2)}, {vr(I_+r,2)} op_sel:[0,1,0] op_sel_hi:[1,1,1]")
            a(f"v_pk_mov_b32 {vr(R_+r,2)}, v[12:13], v[12:13] op_sel:[0,1]")
        for m in range(8):
            a(f"v_mov_b32 v{G+4*m}, 0"); a(f"v_mov_b32 v{G+4*m+1}, s{sTAG}"); a(f"v_mov_b32 v{G+4*m+2}, 0"); a(f"v_mov_b32 v{G+4*m+3}, s{sTAG}")
        a("v_xor_b32 v2, 1, v6"); a("v_lshl_add_u32 v11, v2, 10, v11")
        def aggloads():
            Ldn = a.newlabel("L_aggdone")
            if c.samexcd: a(f"buffer_load_dwordx2 v[250:251], v249, s[{sWS}:{sWS+3}], s{sXI} offen sc1")
            for m in range(8):
                a(f"s_cmp_le_u32 s{sC}, {2*m}"); a(f"s_cbranch_scc1 {Ldn}")
                a(f"s_cmp_eq_u32 s{sC}, {2*m+1}"); a("s_cselect_b32 exec_hi, 0, -1")
                a(f"s_sub_u32 s{sT0}, s59, {(2+2*m)*1024}")
                a(f"buffer_load_dwordx4 {vr(G+4*m,4)}, v11, s[{sWS}:{sWS+3}], s{sT0} offen sc1")
            a.label(Ldn)
            a("s_mov_b32 exec_hi, -1")
        a("s_waitcnt lgkmcnt(0)")
        aggloads()
        cmul(a, 12, vCo, vLam)
        cur, oth = 12, 14
        for r in range(16):
            a(f"v_mov_b32 v{Qr+r}, v{cur}"); a(f"v_mov_b32 v{Qi+r}, v{cur+1}")
            if r < 15:
                cmul(a, oth, cur, vLam); cur, oth = oth, cur
        Lx = a.newlabel("L_noxi")
        a.vm_reset()
        a(f"s_cmp_lg_u32 s{sWN}, 0"); a(f"s_cbranch_scc1 {Lx}")
        a(f"v_lshlrev_b32 v{vP0+3}, 16, v{vP0+3}"); a(f"v_lshlrev_b32 v{vP0+4}, 16, v{vP0+4}")
        for r in range(16):
            a(f"v_lshlrev_b32 v{ACC2+r}, 16, v{ACC2+r}"); a(f"v_lshlrev_b32 v{ACC2+16+r}, 16, v{ACC2+16+r}")
            a(f"v_mul_f32 v{ACC2+r}, v{ACC2+r}, v{vP0+3}"); a(f"v_mul_f32 v{ACC2+16+r}, v{ACC2+16+r}, v{vP0+4}")
            a(f"v_cvt_pk_bf16_f32 v2, v{ACC2+r}, v{ACC2+16+r}")
            a(f"v_lshlrev_b32 v{ACC2+r}, 16, v2"); a(f"v_and_b32 v{ACC2+16+r}, 0xffff0000, v2")
        a.label(Lx)
        Lp, Lg = a.newlabel("L_aggpoll"), a.newlabel("L_aggok")
        a(f"s_mov_b32 s{sCNT}, {c.spin_max}")
        a.label(Lp)
        a("s_waitcnt vmcnt(0)")
        a(f"v_xor_b32 v2, s{sTAG}, v{G+1}")
        for m in range(8):
            for k in (1, 3):
                if m == 0 and k == 1: continue
                a(f"v_bitop3_b32 v2, v2, v{G+4*m+k}, s{sTAG} bitop3:0xf6")
        if c.samexcd: a(f"v_bitop3_b32 v2, v2, v251, s{sTAG} bitop3:0xf6")
        a("v_cmp_ne_u32 vcc, 0, v2")
        a(f"s_cbranch_vccz {Lg}")
        a(f"s_sub_u32 s{sCNT}, s{sCNT}, 1"); a(f"s_cbranch_scc1 {Lg}")
        aggloads()
        a(f"s_branch {Lp}")
        a.label(Lg)
        self.stamp(5)
        if c.samexcd: a(f"v_cmp_ne_u32 s[70:71], s{sXCC}, v250")
        for m in range(6, -1, -1):
            s_, d_ = G + 4 * (m + 1), G + 4 * m
            a(f"v_fmac_f32 v{d_}, v{vL256}, v{s_}"); a(f"v_fmac_f32 v{d_+2}, v{vL256}, v{s_+2}")
            a(f"v_fmac_f32 v{d_}, v{vN256}, v{s_+2}"); a(f"v_fmac_f32 v{d_+2}, v{vL256+1}, v{s_}")
        a(f"v_mul_f32 v12, v{vMu}, v{G}"); a(f"v_mul_f32 v13, v{vMu}, v{G+2}")
        a(f"v_fma_f32 v12, -v{vMu+1}, v{G+2}, v12"); a(f"v_fmac_f32 v13, v{vMu+1}, v{G}")
        a("v_mov_b32 v14, v12"); a("v_mov_b32 v15, v13")
        a("v_permlane32_swap_b32 v12, v14"); a("v_permlane32_swap_b32 v13, v15")
        a("v_pk_add_f32 v[12:13], v[12:13], v[14:15]")
        cfma(a, vPre, 12, vLseg)
        a(f"s_mul_i32 s{sT0}, s3, 4608"); a(f"s_add_u32 s{sT0}, s{sT0}, {TILE}")
        a("v_mul_u32_u24 v2, 2304, v6"); a("v_lshl_add_u32 v2, v7, 2, v2"); a(f"v_add_u32 v2, s{sT0}, v2")
        a("v_mul_u32_u24 v3, 144, v7"); a("v_lshl_add_u32 v3, v6, 4, v3"); a(f"v_add_u32 v3, s{sT0}, v3")
        for r in range(0, 16, 2):
            R2, I2, QR, QI, CA = vr(R_+r,2), vr(I_+r,2), vr(Qr+r,2), vr(Qi+r,2), vr(vPre,2)
            a(f"v_pk_fma_f32 {R2}, {QR}, {CA}, {R2} op_sel:[0,0,0] op_sel_hi:[1,0,1]")
            a(f"v_pk_fma_f32 {I2}, {QR}, {CA}, {I2} op_sel:[0,1,0] op_sel_hi:[1,1,1]")
            a(f"v_pk_fma_f32 {R2}, {QI}, {CA}, {R2} op_sel:[0,1,0] op_sel_hi:[1,1,1] neg_lo:[0,1,0] neg_hi:[0,1,0]")
            a(f"v_pk_fma_f32 {I2}, {QI}, {CA}, {I2} op_sel:[0,0,0] op_sel_hi:[1,0,1]")
            for k in range(2):
                a(f"v_cvt_pk_bf16_f32 v{12+k}, v{R_+r+k}, -v{I_+r+k}")
                a(f"ds_write_b32 v2, v{12+k} offset:{144*(r+k)}")
        for k in range(4): a(f"ds_read_b128 {vr(G+4*k,4)}, v3 offset:{32*k}")
        a(f"s_lshl_b32 s{sT0}, s{sC}, 2"); a(f"s_add_u32 s{sT0}, s{sT0}, s{sWM}"); a(f"s_mul_i32 s{sT0}, s{sT0}, 72*1024"); a(f"s_add_u32 s58, s{sT0}, {WS_H}")
        a(f"s_lshl_b32 s{sT0}, s{sJ}, 13"); a(f"s_lshl_b32 s{sT1}, s{sWN}, 12"); a(f"s_add_u32 s{sT0}, s{sT0}, s{sT1}"); a(f"s_add_u32 s{sT0}, s{sT0}, s58")
        a("v_lshlrev_b32 v4, 4, v1")
        fs = c.flag_stride
        cstride = max(128, 16 * fs)
        a(f"s_mul_i32 s59, s{sC}, {cstride}"); a(f"s_add_u32 s59, s59, {WS_FLG}")
        a(f"s_mul_i32 s{sT1}, s{sJ}, {fs}"); a(f"v_mov_b32 v2, s{sT1}"); a(f"v_mov_b32 v3, s{sTAG}")
        Lf = a.newlabel("L_noflag")
        def hstore(fl):
            for k in range(4):
                a(f"s_waitcnt lgkmcnt({3-k})")
                a(f"buffer_store_dwordx4 {vr(G+4*k,4)}, v4, s[{sWS}:{sWS+3}], s{sT0} offen offset:{1024*k}{fl}")
            a("s_waitcnt vmcnt(0)")
            a("s_barrier")
            a("s_cmp_lg_u32 s3, 0"); a(f"s_cbranch_scc1 {Lf}")
            a("s_mov_b64 exec, 1")
            a(f"buffer_store_dword v3, v2, s[{sWS}:{sWS+3}], s59 offen{fl}")
            a("s_mov_b64 exec, -1")
        if c.samexcd:
            Ls = a.newlabel("L_slow")
            a("s_cmp_lg_u64 s[70:71], 0"); a(f"s_cbranch_scc1 {Ls}")
            hstore(""); a(f"s_branch {Lf}")
            a.label(Ls)
        hstore(" sc1")
        a.label(Lf)
        self.stamp(6)
        a.vm = [("c7", False), ("c8", False)]
        cwrite(7); cwrite(8)
        a("s_waitcnt lgkmcnt(0)")
        a("s_barrier")
        if c.stamps:
            Lw = a.newlabel("L_w")
            a(f"s_cmp_eq_u32 s{sWN}, 0"); a(f"s_cbranch_scc1 {Lw}")
            self.store_stamps(7, sWS)
            a("s_endpgm")
            a.label(Lw)
        else:
            a(f"s_cmp_lg_u32 s{sWN}, 0"); a("s_cbranch_scc1 L_exit")
        HR, NH, CFR = 64, 34, 216
        a(f"v_add_u32 v5, {CF}, v4"); a(f"v_add_u32 v6, {CF+24*2064}, v4"); a(f"v_add_u32 v8, {CF+48*2064}, v4")
        def cread(ks):
            b = (5, 6, 8)[ks // 24]; off = (ks % 24) * 2064; d = CFR + 8 * (ks % 3)
            a(f"ds_read_b128 {vr(d,4)}, v{b} offset:{off}"); a(f"ds_read_b128 {vr(d+4,4)}, v{b} offset:{off+1024}")
        cread(0); cread(1)
        a(f"v_min_u32 v2, 8, v1"); a(f"v_mul_u32_u24 v2, {fs}, v2")
        Lp, Lg = a.newlabel("L_flpoll"), a.newlabel("L_flok")
        a(f"s_mov_b32 s{sCNT}, {c.spin_max}")
        a.label(Lp)
        a(f"buffer_load_dword v3, v2, s[{sWS}:{sWS+3}], s59 offen sc1")
        a("s_waitcnt vmcnt(0)")
        a(f"v_cmp_ne_u32 vcc, s{sTAG}, v3")
        a(f"s_cbranch_vccz {Lg}")
        a(f"s_sub_u32 s{sCNT}, s{sCNT}, 1"); a(f"s_cbranch_scc0 {Lp}")
        a.label(Lg)
        self.stamp(7)
        a.vm_reset()
        def hload(ks):
            if ks % 4 == 0 and ks: a("s_add_u32 s58, s58, 4096")
            a.vmem(f"buffer_load_dwordx4 {vr(HR+4*(ks%NH),4)}, v4, s[{sWS}:{sWS+3}], s58 offen offset:{1024*(ks%4)} sc1", f"h{ks}")
        for ks in range(NH): hload(ks)
        a(f"s_lshl_b32 s{sT0}, s{sC}, 7"); a(f"s_lshl_b32 s{sT1}, s{sWM}, 5"); a(f"s_add_u32 s{sT0}, s{sT0}, s{sT1}"); a(f"s_mul_i32 s{sT0}, s{sT0}, 4608")
        a(f"s_lshl_b32 s{sT1}, s{sJ}, 8"); a(f"s_add_u32 s{sT0}, s{sT0}, s{sT1}"); a(f"s_add_u32 s{sT0}, s{sT0}, 2304")
        a("v_lshrrev_b32 v2, 5, v1"); a("v_mul_u32_u24 v2, 18432, v2"); a("v_lshl_add_u32 v9, v7, 2, v2")
        for ks in range(72):
            if ks + 2 < 72: cread(ks + 2)
            a.wait_vm(f"h{ks}", extra=f" lgkmcnt({min(4, 2*(71-ks))})")
            d = CFR + 8 * (ks % 3); h = HR + 4 * (ks % NH)
            a(f"v_mfma_f32_32x32x16_bf16 {vr(ACC2,16)}, {vr(h,4)}, {vr(d,4)}, {vr(ACC2,16)}")
            a(f"v_mfma_f32_32x32x16_bf16 {vr(ACC2+16,16)}, {vr(h,4)}, {vr(d+4,4)}, {vr(ACC2+16,16)}")
            if ks + NH < 72: hload(ks + NH)
        self.stamp(8)
        for r in range(16):
            row = (r & 3) + 8 * (r >> 2)
            a(f"s_add_u32 s{sT1}, s{sT0}, {row*4608}")
            for dt in range(2):
                a(f"buffer_store_dword v{ACC2+16*dt+r}, v9, s[{sOS}:{sOS+3}], s{sT1} offen offset:{128*dt}{c.out_flags}")
        if c.stamps:
            self.store_stamps(9, sWS)
        a("s_endpgm")

    def roleA(self):
        a, c = self.a, self.c
        a.vm = [("pf", False)] if c.prefetch else []
        PS = 1312
        UB = 0
        ST = 31488
        KB = ST
        YB = KB + 6 * 4160
        YCH, OPL = 16640, 9472
        YPL = [0, 578 * 4, 1184 * 4, 1762 * 4]
        XCH = 11952
        assert KB + 6 * 4160 <= ST + 5 * 16048 + XCH and ST + 8 * 16048 <= LDS_TOTAL and YB + 6 * YCH <= LDS_TOTAL
        sD0, sCH, sUS, sOS, sWS = 8, 9, 60, 64, 80
        sT0, sT1, sPASS, sKIND = 14, 15, 12, 13
        U0 = [4, 8, 12, 16]
        P = 20; vDT = 26; vDS = 28
        a.label("L_roleA")
        a(f"s_mul_i32 s{sD0}, s4, 72"); a(f"s_sub_u32 s{sT0}, s5, 18"); a(f"s_mul_i32 s{sT0}, s{sT0}, 6"); a(f"s_add_u32 s{sD0}, s{sD0}, s{sT0}")
        a(f"s_lshr_b32 s{sT0}, s3, 1"); a(f"s_add_u32 s{sT0}, s{sT0}, 2"); a("s_cmp_lt_u32 s3, 4"); a(f"s_cselect_b32 s{sCH}, s3, s{sT0}")
        a(f"s_cselect_b32 s{sPASS}, 2, 1")
        a(f"s_add_u32 s{sT0}, s{sD0}, s{sCH}")
        a(f"s_lshl_b32 s{sT1}, s{sT0}, 8"); a(f"v_lshl_add_u32 v2, v1, 2, s{sT1}")
        a(f"s_lshl_b32 s{sT1}, s{sT0}, 1"); a(f"v_mov_b32 v3, s{sT1}")
        a("v_lshrrev_b32 v31, 2, v0"); a("v_and_b32 v32, 3, v0"); a("v_lshl_add_u32 v33, v31, 4, v32")
        a("v_mul_u32_u24 v34, 1152, v33"); a(f"s_lshl_b32 s{sT1}, s{sD0}, 1"); a(f"v_add_u32 v34, s{sT1}, v34")
        a(f"v_mov_b32 v35, s{sT1}")
        a("s_waitcnt lgkmcnt(0)")
        for k, p in enumerate((pAre, pAim, pABre, pABim, pACre, pACim)):
            a.vmem(f"global_load_dword v{P+k}, v2, {sp(p)}", "par")
        a.vmem(f"global_load_ushort v{vDT}, v3, {sp(pAdt)}", "par")
        srd(a, sUS, pAu, XSZ); srd(a, sOS, pOut, OUTSZ); srd(a, sWS, pWs, WS_SIZE)
        a.vmem(f"global_load_dwordx3 {vr(vDS,3)}, v35, {sp(pAD)}", "par")
        def gather():
            for j in range(4):
                a(f"s_mov_b32 s{sT1}, {4608*j}")
                a.vmem(f"buffer_load_dwordx3 {vr(U0[j],3)}, v34, s[{sUS}:{sUS+3}], s{sT1} offen", "u")
        if c.l2pf: self.pf_xb(sT0, sT1, 2, 251)
        else: gather()
        Ln = a.newlabel("L_nononce")
        a(f"s_cmp_lg_u32 s2, {NB}"); a(f"s_cbranch_scc1 {Ln}")
        a("s_cmp_lg_u32 s3, 7"); a(f"s_cbranch_scc1 {Ln}")
        a("v_mov_b32 v36, 0")
        a("s_mov_b64 exec, 1")
        a(f"global_load_dword v37, v36, {sp(pWs)} sc1")
        a("s_waitcnt vmcnt(0)")
        a("v_add_u32 v37, 1, v37"); a("v_max_u32 v37, 1, v37")
        a(f"global_store_dword v36, v37, {sp(pDbg)} sc1")
        a(f"global_store_dword v36, v37, {sp(pWs)} sc1")
        a("s_mov_b64 exec, -1")
        a.label(Ln)
        self.stamp(1)
        a("v_lshrrev_b32 v36, 4, v0"); a(f"v_mul_u32_u24 v36, {PS}, v36"); a("v_and_b32 v37, 15, v0"); a("v_lshl_add_u32 v36, v37, 4, v36")
        for k in range(4): a(f"v_mov_b32 v{40+k}, 0")
        Lz = a.newlabel("L_noz")
        a("s_cmp_ge_u32 s3, 6"); a(f"s_cbranch_scc1 {Lz}")
        a(f"ds_write_b128 v36, v[40:43] offset:{UB}")
        a.label(Lz)
        a(f"s_mul_i32 s{sT0}, s3, 16048"); a(f"s_add_u32 s58, s{sT0}, {ST}")
        a("v_lshlrev_b32 v36, 2, v1"); a("v_add_u32 v36, s58, v36")
        a("v_and_b32 v7, 31, v1"); a("v_lshrrev_b32 v3, 5, v1")
        a("v_mul_u32_u24 v37, 272, v7"); a("v_lshl_add_u32 v37, v3, 4, v37"); a("v_add_u32 v37, s58, v37")
        a.wait_vm("par")
        self.stamp(2)
        if c.l2pf:
            a(f"s_sub_u32 s{sKIND}, s5, 18"); a(f"s_lshl_b32 s{sKIND}, s{sKIND}, 3"); a(f"s_add_u32 s{sKIND}, s{sKIND}, s3")
            a("v_mul_u32_u24 v2, 1152, v1")
            Lu = a.newlabel("L_nopfu")
            a(f"s_cmp_ge_u32 s{sKIND}, 64"); a(f"s_cbranch_scc1 {Lu}")
            a(f"s_lshr_b32 s{sT0}, s{sKIND}, 1"); a(f"s_mul_i32 s{sT0}, s{sT0}, {64*1152}")
            a(f"s_and_b32 s{sT1}, s{sKIND}, 1"); a(f"s_add_u32 s{sT1}, s{sT1}, s4"); a(f"s_lshl_b32 s{sT1}, s{sT1}, 7"); a(f"s_add_u32 s{sT0}, s{sT0}, s{sT1}")
            a.vmem(f"buffer_load_dword v250, v2, s[{sUS}:{sUS+3}], s{sT0} offen", "pf3", optional=True)
            a.label(Lu)
            Lc_ = a.newlabel("L_nopfc")
            a(f"s_cmp_ge_u32 s{sKIND}, 81"); a(f"s_cbranch_scc1 {Lc_}")
            a("v_lshlrev_b32 v2, 7, v1"); a(f"s_lshl_b32 s{sT0}, s{sKIND}, 13"); a(f"v_add_u32 v2, s{sT0}, v2")
            a.vmem(f"global_load_dword v249, v2, {sp(pCre)}", "pf3", optional=True)
            a.vmem(f"global_load_dword v248, v2, {sp(pCim)}", "pf3", optional=True)
            a.label(Lc_)
            a(f"s_mov_b32 s{sKIND}, 1")
        a(f"v_lshlrev_b32 v{vDT}, 16, v{vDT}"); a(f"v_mul_f32 v{vDT}, {LOG2E}, v{vDT}"); a(f"v_exp_f32 v{vDT}, v{vDT}")
        a(f"v_cvt_pk_bf16_f32 v{vDT}, v{vDT}, v{vDT}"); a(f"v_lshlrev_b32 v{vDT}, 16, v{vDT}")
        Lh = a.newlabel("L_lo")
        a("s_cmp_lt_u32 s3, 4"); a(f"s_cbranch_scc1 {Lh}")
        a("s_bitcmp0_b32 s3, 0"); a(f"s_cbranch_scc1 {Lh}")
        for k in range(6): a(f"v_lshrrev_b32 v{P+k}, 16, v{P+k}")
        a.label(Lh)
        F = 64
        for k in range(16): a(f"v_mov_b32 v{F+k}, 0")
        E1, E8, E256, V = 40, 42, 44, 96
        T = 46
        a.label("L_pass")
        for k in range(6): a(f"v_lshlrev_b32 v{T+k}, 16, v{P+k}")
        for k in range(6): a(f"v_lshrrev_b32 v{P+k}, 16, v{P+k}")
        a(f"v_mul_f32 v{T}, v{vDT}, v{T}"); a(f"v_mul_f32 v{T+1}, v{vDT}, v{T+1}")
        a(f"v_mul_f32 v{T}, {LOG2E}, v{T}"); a(f"v_mul_f32 v{T+1}, {INV2PI}, v{T+1}")
        cexp(a, E1, T, T + 1, None, T + 6, T + 7)
        cexp(a, E8, T, T + 1, f2u(8.0), T + 8, T + 9)
        cexp(a, E256, T, T + 1, f2u(256.0), T + 6, T + 7)
        cmul(a, T + 6, T + 4, T + 2)
        a(f"v_mul_f32 v{V}, v{vDT}, v{T+6}"); a(f"v_mul_f32 v{V+1}, v{vDT}, v{T+7}")
        rows = {}
        h0 = [0,1,2,3,4,5,6,7, 256,258,260,262,264, 1024,1032]
        h1 = [512,516,520, 768,772,776, 1280,1288, 1536,1544, 1792,1800]
        for r, o in enumerate(h0): rows[o] = (r & 3) + 8 * (r >> 2)
        for r, o in enumerate(h1): rows[o] = (r & 3) + 8 * (r >> 2) + 4
        assert sorted(rows.values()) == list(range(27))
        plan = [(j, j - 1, E1) for j in range(1, 9)]
        for q in range(1, 8): plan.append((256 * q, 256 * (q - 1), E256))
        for q in range(1, 8): plan.append((256 * q + 8, 256 * (q - 1) + 8, E256))
        plan += [(258, 2, E256), (260, 4, E256), (262, 6, E256), (516, 260, E256), (772, 516, E256)]
        reg = {0: V}
        for n_, (o, s_, m_) in enumerate(plan): reg[o] = V + 2 + 2 * n_
        xops = []
        tmpc = [60, 61, 62, 63]
        def xrow(o, k):
            a(f"v_cvt_pk_bf16_f32 v{tmpc[k%4]}, v{reg[o]}, -v{reg[o]+1}")
            a(f"ds_write_b32 v36, v{tmpc[k%4]} offset:{272*rows[o]}")
        cnt = [0]
        def doX(n_):
            o, s_, m_ = plan[n_]
            cmul(a, reg[o], reg[s_], m_)
            if o in rows: xrow(o, cnt[0]); cnt[0] += 1
        YA, YBr = 56, 58
        def yrow(col, r_):
            a(f"v_cvt_pk_bf16_f32 v{tmpc[cnt[0]%4]}, v{r_}, v{r_+1}")
            a(f"ds_write_b32 v36, v{tmpc[cnt[0]%4]} offset:{272*(27+col)}"); cnt[0] += 1
        xrow(0, cnt[0]); cnt[0] += 1
        a(f"v_mov_b32 v{tmpc[cnt[0]%4]}, 0x3f80"); a(f"ds_write_b32 v36, v{tmpc[cnt[0]%4]} offset:{272*27}"); cnt[0] += 1
        yrow(1, E8)
        cur = E8; nxt = YA
        for col in range(2, 32):
            cmul(a, nxt, cur, E8); yrow(col, nxt)
            cur = nxt; nxt = YBr if nxt == YA else YA
            if col - 2 < len(plan): doX(col - 2)
        if c.l2pf:
            Lg_ = a.newlabel("L_nog")
            a(f"s_cmp_eq_u32 s{sKIND}, 0"); a(f"s_cbranch_scc1 {Lg_}")
            gather()
            a(f"s_mov_b32 s{sKIND}, 0")
            a.label(Lg_)
        FA = 160
        for ks in range(8):
            a(f"ds_read_b128 {vr(FA+8*ks,4)}, v37 offset:{32*ks}")
            a(f"ds_read_b128 {vr(FA+8*ks+4,4)}, v37 offset:{27*272+32*ks}")
        for ks in range(8):
            a(f"s_waitcnt lgkmcnt({14-2*ks})")
            a(f"v_mfma_f32_32x32x16_bf16 {vr(F,16)}, {vr(FA+8*ks,4)}, {vr(FA+8*ks+4,4)}, {vr(F,16)}")
        a(f"s_sub_u32 s{sPASS}, s{sPASS}, 1"); a(f"s_cmp_lg_u32 s{sPASS}, 0"); a("s_cbranch_scc1 L_pass")
        self.stamp(3)
        a.wait_vm("u")
        a("s_mov_b32 s6, 0x05040100"); a("s_mov_b32 s7, 0x07060302")
        a(f"v_mul_u32_u24 v38, {PS}, v32"); a("v_lshl_add_u32 v38, v31, 3, v38")
        for ch in range(6):
            sel = "s7" if ch & 1 else "s6"; m = ch >> 1; t = 40 + 2 * (ch % 3)
            a(f"v_perm_b32 v{t}, v{U0[1]+m}, v{U0[0]+m}, {sel}"); a(f"v_perm_b32 v{t+1}, v{U0[3]+m}, v{U0[2]+m}, {sel}")
            a(f"ds_write_b64 v38, {vr(t,2)} offset:{UB+ch*4*PS+256}")
        a("v_lshlrev_b32 v39, 4, v1")
        Le = a.newlabel("L_noex")
        a("s_cmp_lt_u32 s3, 4"); a(f"s_cbranch_scc1 {Le}")
        a("s_bitcmp0_b32 s3, 0"); a(f"s_cbranch_scc1 {Le}")
        a("v_add_u32 v2, s58, v39")
        for k in range(4): a(f"ds_write_b128 v2, {vr(F+4*k,4)} offset:{XCH+1024*k}")
        a.label(Le)
        a("s_waitcnt lgkmcnt(0)")
        a("s_barrier")
        Lk, Lk2 = a.newlabel("L_nok"), a.newlabel("L_full")
        a("s_cmp_lt_u32 s3, 4"); a(f"s_cbranch_scc1 {Lk2}")
        a("s_bitcmp1_b32 s3, 0"); a(f"s_cbranch_scc1 {Lk}")
        a("v_add_u32 v2, s58, v39")
        for k in range(4): a(f"ds_read_b128 {vr(96+4*k,4)}, v2 offset:{16048+XCH+1024*k}")
        a("s_waitcnt lgkmcnt(0)")
        for k in range(0, 16, 2): a(f"v_pk_add_f32 {vr(F+k,2)}, {vr(F+k,2)}, {vr(96+k,2)}")
        a.label(Lk2)
        a(f"s_mul_i32 s{sT0}, s{sCH}, 4160"); a(f"s_add_u32 s{sT0}, s{sT0}, {KB+64}")
        a(f"v_lshl_add_u32 v2, v7, 4, s{sT0}")
        a("v_and_b32 v3, 1, v1"); a("v_cmp_eq_u32 vcc, 1, v3")
        def blk(b, quad, tb):
            for k, (x, y) in enumerate(quad): a(f"v_cvt_pk_bf16_f32 v{tb+k}, v{x}, v{y}")
            a(f"ds_write_b128 v2, {vr(tb,4)} offset:{512*b}")
        def blk3(b, f0, f8, tb):
            a(f"v_cndmask_b32 v{tb+4}, v{f0}, v{f8}, vcc")
            blk(b, [(f0, f0), (f0, f0), (tb + 4, f8), (f8, f8)], tb)
        a("s_mov_b32 exec_hi, 0")
        blk(0, [(F, F+1), (F+2, F+3), (F+4, F+5), (F+6, F+7)], 96)
        blk(1, [(F+8, F+8), (F+9, F+10), (F+10, F+10), (F+11, F+12)], 104)
        blk3(4, F + 13, F + 14, 112)
        a("s_mov_b32 exec_hi, -1"); a("s_mov_b32 exec_lo, 0")
        blk(2, [(F, F), (F, F+1), (F+1, F+1), (F+2, F+2)], 96)
        blk(3, [(F+3, F+3), (F+3, F+4), (F+4, F+4), (F+5, F+5)], 104)
        blk3(5, F + 6, F + 7, 112); blk3(6, F + 8, F + 9, 120); blk3(7, F + 10, F + 11, 128)
        a("s_mov_b32 exec_hi, 15")
        for k in range(4): a(f"v_mov_b32 v{136+k}, 0")
        a("v_subrev_u32 v2, 64, v2")
        a("ds_write_b128 v2, v[136:139]")
        a("s_mov_b64 exec, -1")
        a.label(Lk)
        a("s_waitcnt lgkmcnt(0)")
        a("s_barrier")
        self.stamp(4)
        ACC, AF, BF = 128, 64, 96
        def acc(phi, it, rt): return ACC + 32 * phi + 8 * it + 4 * rt
        a("v_lshrrev_b32 v2, 4, v1"); a("v_lshlrev_b32 v2, 6, v2")
        a("v_bfe_u32 v3, v1, 2, 2"); a("v_lshl_add_u32 v2, v3, 3, v2")
        a("v_and_b32 v3, 3, v1"); a("v_lshlrev_b32 v3, 3, v3"); a("v_sub_u32 v2, v3, v2")
        a(f"s_mul_i32 s{sT0}, s{sCH}, 4160"); a(f"s_add_u32 s{sT0}, s{sT0}, {KB+216}"); a(f"v_add_u32 v40, s{sT0}, v2")
        a("v_and_b32 v2, 15, v1"); a("v_lshrrev_b32 v3, 4, v1"); a("v_add_u32 v41, v2, v3"); a("v_lshlrev_b32 v41, 4, v41")
        a(f"s_mul_i32 s{sT0}, s{sCH}, {4*PS}"); a(f"s_add_u32 s{sT0}, s{sT0}, {UB+192}"); a(f"v_add_u32 v41, s{sT0}, v41")
        a("v_lshrrev_b32 v42, 2, v2"); a("v_lshlrev_b32 v42, 1, v42"); a("v_lshl_add_u32 v42, v2, 3, v42"); a("v_add_u32 v42, v42, v3"); a("v_lshlrev_b32 v42, 2, v42")
        a(f"s_mul_i32 s{sT0}, s{sCH}, {YCH}"); a(f"s_add_u32 s{sT0}, s{sT0}, {YB}"); a(f"v_add_u32 v42, s{sT0}, v42")
        a("v_and_b32 v43, 51, v1"); a("v_cmp_eq_u32 vcc, 51, v43"); a("v_mov_b32 v43, 4"); a("v_mov_b32 v44, 12")
        a("v_cndmask_b32 v43, v43, v44, vcc"); a("v_add_u32 v43, v43, v42")
        a(f"s_mov_b32 s{sPASS}, 4")
        def conv(its, tag):
            for phi in range(4):
                for it in its:
                    for k in range(8): a(f"v_mov_b32 v{acc(phi,it,0)+k}, 0")
            Lc = f"L_conv{tag}"
            a.label(Lc)
            qs = sorted({q for it in its for q in range(it + 1)})
            ms = sorted({it - q for it in its for q in range(it + 1)})
            seq = [(phi, m) for phi in range(4) for m in ms]
            def bread(n_):
                phi, m = seq[n_]
                a(f"ds_read_b128 {vr(BF+4*(n_%8),4)}, v41 offset:{phi*PS+256*m+16}")
            lg = []
            for q in qs:
                for rt in range(2):
                    for j0 in (0, 4):
                        a(f"ds_read_b64_tr_b16 {vr(AF+8*q+4*rt+j0//2,2)}, v40 offset:{2*(128+512*q+16*rt-4*j0)-216}")
                        lg.append(("a", q, rt))
                if q == qs[0]:
                    bread(0); lg.append(("b", 0))
            PF = 3
            for n_ in range(1, min(PF, len(seq))): bread(n_); lg.append(("b", n_))
            def waitfor(key):
                if key in lg:
                    idx = max(i for i, k_ in enumerate(lg) if k_ == key)
                    n = len(lg) - 1 - idx
                    a(f"s_waitcnt lgkmcnt({min(n,15)})")
                    del lg[:idx + 1]
            for n_, (phi, m) in enumerate(seq):
                if n_ + PF < len(seq): bread(n_ + PF); lg.append(("b", n_ + PF))
                waitfor(("b", n_))
                for it in its:
                    q = it - m
                    if q < 0: continue
                    for rt in range(2):
                        waitfor(("a", q, rt))
                        a(f"v_mfma_f32_16x16x32_bf16 {vr(acc(phi,it,rt),4)}, {vr(AF+8*q+4*rt,4)}, {vr(BF+4*(n_%8),4)}, {vr(acc(phi,it,rt),4)}")
            a("v_add_u32 v40, 256, v40"); a("v_subrev_u32 v41, 64, v41")
            a(f"s_sub_u32 s{sPASS}, s{sPASS}, 1"); a(f"s_cmp_lg_u32 s{sPASS}, 0"); a(f"s_cbranch_scc1 {Lc}")
            self.stamp(8)
            for it in its:
                for rt in range(2):
                    A0, A1, A2, A3 = (acc(p_, it, rt) for p_ in range(4))
                    a(f"v_add_f32 v{A0+1}, v{A0+1}, v{A1}")
                    a(f"v_add_f32 v{A0+2}, v{A0+2}, v{A1+1}"); a(f"v_add_f32 v{A0+3}, v{A0+3}, v{A1+2}")
                    a(f"v_add_f32 v{A1+3}, v{A1+3}, v{A2+2}"); a(f"v_add_f32 v{A2+3}, v{A2+3}, v{A3+2}")
                    a(f"v_add_f32 v{A0+2}, v{A0+2}, v{A2}"); a(f"v_add_f32 v{A0+3}, v{A0+3}, v{A2+1}")
                    a(f"v_add_f32 v{A1+3}, v{A1+3}, v{A3+1}"); a(f"v_add_f32 v{A0+3}, v{A0+3}, v{A3}")
                    o = 4 * (136 * it + 4 * rt)
                    for r in range(4): a(f"ds_write_b32 v42, v{A0+r} offset:{YPL[r]+o}")
                    for r, src in enumerate((A1 + 3, A2 + 3, A3 + 3)):
                        if rt == 0: a(f"ds_write_b32 v42, v{src} offset:{OPL+YPL[r]+o+4}")
                        else: a(f"ds_write_b32 v43, v{src} offset:{OPL+YPL[r]+o}")
            if 0 in its:
                a("s_mov_b64 exec, 1"); a("v_mov_b32 v44, 0")
                for r in range(3): a(f"ds_write_b32 v42, v44 offset:{OPL+YPL[r]}")
                a("s_mov_b64 exec, -1")
        Lh0, Lh1, Lce = a.newlabel("L_h0"), a.newlabel("L_h1"), a.newlabel("L_ce")
        a("s_cmp_ge_u32 s3, 4"); a(f"s_cbranch_scc1 {Lh0}")
        conv([0, 1, 2, 3], "f"); a(f"s_branch {Lce}")
        a.label(Lh0)
        a("s_bitcmp1_b32 s3, 0"); a(f"s_cbranch_scc1 {Lh1}")
        conv([0, 3], "a"); a(f"s_branch {Lce}")
        a.label(Lh1)
        conv([1, 2], "b")
        a.label(Lce)
        self.stamp(5)
        a("s_waitcnt lgkmcnt(0)")
        a("s_barrier")
        self.stamp(6)
        a("v_lshrrev_b32 v2, 3, v31"); a("v_lshlrev_b32 v2, 1, v2"); a("v_lshl_add_u32 v2, v31, 2, v2"); a("v_lshlrev_b32 v2, 2, v2")
        a("v_and_b32 v3, 1, v32"); a("v_mul_u32_u24 v3, 2312, v3"); a("v_add_u32 v2, v2, v3")
        a("v_lshrrev_b32 v3, 1, v32"); a("v_mul_u32_u24 v3, 4736, v3"); a("v_add_u32 v2, v2, v3"); a(f"v_add_u32 v2, {YB}, v2")
        a("v_cmp_eq_u32 vcc, 3, v32"); a(f"v_mov_b32 v44, {OPL}"); a("v_cndmask_b32 v44, v44, 0, vcc"); a("v_add_u32 v44, v44, v2")
        a("v_cndmask_b32 v45, 1.0, 0, vcc")
        Y, O = 64, 128
        a(f"v_add_u32 v40, {3*YCH}, v2"); a(f"v_add_u32 v41, {3*YCH}, v44")
        for ch in range(6):
            by, bo, off = (2, 44, YCH * ch) if ch < 3 else (40, 41, YCH * (ch - 3))
            a(f"ds_read_b64 {vr(Y+4*ch,2)}, v{by} offset:{off}"); a(f"ds_read_b64 {vr(Y+4*ch+2,2)}, v{by} offset:{off+8}")
            a(f"ds_read_b64 {vr(O+4*ch,2)}, v{bo} offset:{off}"); a(f"ds_read_b64 {vr(O+4*ch+2,2)}, v{bo} offset:{off+8}")
        DS = 46
        for ch in range(6):
            if ch & 1: a(f"v_and_b32 v{DS+ch}, 0xffff0000, v{vDS+ch//2}")
            else: a(f"v_lshlrev_b32 v{DS+ch}, 16, v{vDS+ch//2}")
        a("v_mul_u32_u24 v3, 4608, v33"); a(f"s_lshl_b32 s{sT1}, s{sD0}, 2"); a(f"v_add_u32 v3, s{sT1}, v3")
        S = 96
        for j in range(4):
            for ch in range(6):
                d = S + 8 * j + ch
                if ch & 1: a(f"v_and_b32 v{d}, 0xffff0000, v{U0[j]+ch//2}")
                else: a(f"v_lshlrev_b32 v{d}, 16, v{U0[j]+ch//2}")
                a(f"v_mul_f32 v{d}, v{d}, v{DS+ch}")
        a("s_waitcnt lgkmcnt(0)")
        for j in range(4):
            for ch in range(6):
                d = S + 8 * j + ch; y = Y + 4 * ch + j
                a(f"v_fmac_f32 v{y}, v45, v{O+4*ch+j}")
                a(f"v_cvt_pk_bf16_f32 v{d}, v{y}, v{d}")
                a(f"v_lshlrev_b32 v{y}, 16, v{d}"); a(f"v_and_b32 v{d}, 0xffff0000, v{d}")
                a(f"v_add_f32 v{d}, v{d}, v{y}")
            for ch in range(0, 6, 2):
                d = S + 8 * j + ch
                a(f"v_cvt_pk_bf16_f32 v{d+1}, v{d}, v{d+1}")
                a(f"v_lshlrev_b32 v{d}, 16, v{d+1}"); a(f"v_and_b32 v{d+1}, 0xffff0000, v{d+1}")
            a(f"s_mov_b32 s{sT1}, {18432*j}")
            a(f"buffer_store_dwordx4 {vr(S+8*j,4)}, v3, s[{sOS}:{sOS+3}], s{sT1} offen{c.out_flags}")
            a(f"buffer_store_dwordx2 {vr(S+8*j+4,2)}, v3, s[{sOS}:{sOS+3}], s{sT1} offen offset:16{c.out_flags}")
        self.stamp(7)
        if c.stamps: self.store_stamps(9, sWS)
        a.label("L_exit")
        a("s_endpgm")

    def build(self):
        self.prologue(); self.roleB(); self.roleA()
        body = self.a.finalize()
        ref = open(f"cdna_kernels/{NAME}.s.ref").read()
        head = ref[:ref.index("; @launch")]
        return head + f"""; @launch grid=({NB+NA},1,1) block=(512,1,1) lds={LDS_TOTAL}
.amdgcn_target "amdgcn-amd-amdhsa--gfx950"
.text
.globl {KN}
.p2align 8
.type {KN},@function
{KN}:
{body}
L_codeend:
.if (L_codeend - {KN}) > {self.c.np_kb*1024}
.error "code larger than prefetch window"
.endif
.fill ({self.c.np_kb*1024} - (L_codeend - {KN})) / 4, 4, 0xbf810000
.section .rodata,"a"
.p2align 6
.amdhsa_kernel {KN}
  .amdhsa_next_free_vgpr 256
  .amdhsa_next_free_sgpr 102
  .amdhsa_accum_offset 256
  .amdhsa_group_segment_fixed_size 0
  .amdhsa_kernarg_size 168
  .amdhsa_user_sgpr_count 2
  .amdhsa_user_sgpr_kernarg_segment_ptr 1
  .amdhsa_system_sgpr_workgroup_id_x 1
.end_amdhsa_kernel
"""

if __name__ == "__main__":
    cfg = Cfg()
    out = f"cdna_kernels/{NAME}.s"
    for arg in sys.argv[1:]:
        if arg.startswith("-o="): out = arg[3:]
        else:
            k, v = arg.split("="); setattr(cfg, k, eval(v))
    open(out, "w").write(Gen(cfg).build())
    print("wrote", out)
```

```python
import sys, os
sys.path.insert(0, os.path.dirname(os.path.abspath(__file__)))
from asmlib import *

NAME = "concat_heads__ssm_conv_s4__ssm_conv_s5__prompt"
KN = NAME + "_kernel"

class Cfg:
    stamps = False
    flag_stride = 4
    spin_max = 200000
    np_kb = 40
    prefetch = True
    l2pf = True
    samexcd = False
    span = False
    g1stamps = False
    g1_noread = False
    g1_nomfma = False
    g1_nodma = False
    g1_noside = False
    pretouch_b = False
    tlbwarm = False
    jstamp = False
    pt_stage = -1
    cv_nob = False
    cv_noa = False
    cv_nomfma = False
    h_skip = False
    f_skip = False
    f_whole = False
    no_epi1 = False
    m_s0 = 5
    fl_first = 0
    fl_sleep = 2
    lag_a = 0
    lag_b = 0
    hold_ns = 0
    mid_skip = True
    g2check = False
    fl_flags = ' sc1'
    fl_flags2 = ' sc1'
    dualflag = False
    win1 = (1, 2)
    g1mix = True
    w2delay = 0
    g2refresh = 5
    wbl2 = 0
    f_prio = 2
    fill_frac = 0.3
    fill_skip = 3
    pfc_spread = ()
    pfc_stage = 6
    rot = 'none'
    pf_c_pass = 2
    pf_mid = ''
    touch_small = True
    own_touch = ''
    touch_fl = ''
    touch_h = ''
    cing1 = ()
    pf_early = 'st'
    pf_late = 'u'
    gather_pts = (3, 10, 17, 24)
    g2tail = 0
    g2lead = 12
    pretouch = False
    a_prio = True
    a_pf = 5
    clk = False
    hload_flags = ' sc1'
    skip_a_store = False
    skip_b_store = False
    a_exit = False
    b_exit = False
    endwait = False
    out_flags_b = ''
    out_flags = ''

NB, NA = 144, 108
GRID = 255
WS_AGG, WS_FLG, WS_XI, WS_H, WS_STAMP = 0x1000, 0x40000, 0x60000, 0x100000, 0x800000
WS_SIZE = 0x900000
XSZ, BSZ, OUTSZ = 2359296, 663552, 9437184
LDS_TOTAL = 163840
LOG2E = 0x3fb8aa3b
INV2PI = "0.15915494"

pAu, pAre, pAim, pABre, pABim, pACre, pACim, pAdt, pAD, pX, pLre, pLim, pBre, pBim, pCre, pCim, pBdt, pBD, pOut, pDbg, pWs = [16 + 2 * i for i in range(21)]
def sp(p): return f"s[{p}:{p+1}]"
def vr(a, n): return f"v[{a}:{a+n-1}]"

def cmul(a, dst, x, y):
    a(f"v_pk_mul_f32 {vr(dst,2)}, {vr(x,2)}, {vr(y,2)} op_sel:[0,0] op_sel_hi:[0,1]")
    a(f"v_pk_fma_f32 {vr(dst,2)}, {vr(x,2)}, {vr(y,2)}, {vr(dst,2)} op_sel:[1,1,0] op_sel_hi:[1,0,1] neg_lo:[0,1,0]")
def cfma(a, dst, x, y):
    a(f"v_pk_fma_f32 {vr(dst,2)}, {vr(x,2)}, {vr(y,2)}, {vr(dst,2)} op_sel:[0,0,0] op_sel_hi:[0,1,1]")
    a(f"v_pk_fma_f32 {vr(dst,2)}, {vr(x,2)}, {vr(y,2)}, {vr(dst,2)} op_sel:[1,1,0] op_sel_hi:[1,0,1] neg_lo:[0,1,0]")
def cexp(a, dst, va, vb, scale, t0, t1):
    if scale is None:
        a(f"v_exp_f32 v{t0}, v{va}"); a(f"v_fract_f32 v{t1}, v{vb}")
    else:
        a(f"v_mul_f32 v{t0}, {scale}, v{va}"); a(f"v_mul_f32 v{t1}, {scale}, v{vb}")
        a(f"v_exp_f32 v{t0}, v{t0}"); a(f"v_fract_f32 v{t1}, v{t1}")
    a(f"v_cos_f32 v{dst}, v{t1}"); a(f"v_sin_f32 v{dst+1}, v{t1}")
    a(f"v_mul_f32 v{dst}, v{t0}, v{dst}"); a(f"v_mul_f32 v{dst+1}, v{t0}, v{dst+1}")
def f2u(x):
    import struct
    return "0x%08x" % struct.unpack("<I", struct.pack("<f", x))[0]
def srd(a, s, p, size):
    a(f"s_mov_b32 s{s}, s{p}"); a(f"s_mov_b32 s{s+1}, s{p+1}"); a(f"s_mov_b32 s{s+2}, {size}"); a(f"s_mov_b32 s{s+3}, 0x20000")

class Gen:
    def __init__(self, cfg):
        self.c = cfg; self.a = Asm(); self.nst = 0; self.inB = False
    def stamp(self, k, g1=False):
        if self.c.g1stamps and self.inB and not g1 and k != 0: return
        if self.c.stamps or self.c.span: self.a(f"{'s_memtime' if self.c.clk else 's_memrealtime'} s[{84+2*k}:{85+2*k}]")
    def store_stamps(self, n, sWS):
        if not self.c.stamps: return
        a = self.a
        a("s_waitcnt lgkmcnt(0)")
        a("s_lshl_b32 s58, s2, 3"); a("s_add_u32 s58, s58, s3"); a("s_lshl_b32 s58, s58, 6"); a(f"s_add_u32 s58, s58, {WS_STAMP}")
        a("s_mov_b64 exec, 1")
        a("v_mov_b32 v2, 0")
        for k in range(n):
            a(f"v_mov_b32 v3, s{84+2*k}")
            a(f"buffer_store_dword v3, v2, s[{sWS}:{sWS+3}], s58 offen offset:{4*k}")
        a("s_mov_b64 exec, -1")

    def lag(self, ns):
        if not ns: return
        a = self.a; L = a.newlabel("L_lag")
        a("s_waitcnt vmcnt(0)"); a("s_memrealtime s[100:101]"); a("s_waitcnt lgkmcnt(0)")
        a.label(L)
        a("s_sleep 2"); a("s_memrealtime s[98:99]"); a("s_waitcnt lgkmcnt(0)")
        a("s_sub_u32 s98, s98, s100"); a(f"s_cmp_lt_u32 s98, {ns//10}"); a(f"s_cbranch_scc1 {L}")
    def span_end(self, word, ks):
        if not self.c.span: return
        a = self.a
        a("s_mul_i32 s58, s2, 5"); a("s_add_u32 s58, s58, s3"); a("s_and_b32 s58, s58, 15"); a("s_cmp_lg_u32 s58, 0"); a("s_cbranch_scc1 L_exit")
        a("s_waitcnt vmcnt(0)")
        a("s_memrealtime s[58:59]"); a("s_waitcnt lgkmcnt(0)")
        a("s_mov_b64 exec, 1")
        a("s_not_b32 s84, s84")
        a("v_mov_b32 v2, 0"); a("v_mov_b32 v4, s84")
        a(f"global_atomic_umax v2, v4, {sp(pDbg)} offset:4 sc1")
        for i, k in enumerate(ks):
            a(f"v_mov_b32 v{5+i}, s{84+2*k}")
            a(f"global_atomic_umax v2, v{5+i}, {sp(pDbg)} offset:{4*(word+i)} sc1")
        a("v_mov_b32 v3, s58")
        a(f"global_atomic_umax v2, v3, {sp(pDbg)} offset:{4*(word+len(ks))} sc1")

    def prologue(self):
        a, c = self.a, self.c
        self.stamp(0)
        if c.hold_ns: a("s_memrealtime s[100:101]")
        a("s_load_dwordx16 s[16:31], s[0:1], 0")
        a("s_load_dwordx16 s[32:47], s[0:1], 64")
        a("s_load_dwordx8 s[48:55], s[0:1], 128")
        a("s_load_dwordx2 s[56:57], s[0:1], 160")
        a(f"s_cmp_ge_u32 s2, {GRID}")
        a("s_cbranch_scc1 L_exit")
        a("v_lshrrev_b32 v2, 6, v0")
        a("v_and_b32 v1, 63, v0")
        a("v_readfirstlane_b32 s3, v2")
        a("s_and_b32 s4, s2, 7")
        a("s_lshr_b32 s5, s2, 3")
        if c.prefetch:
            a("s_getpc_b64 s[6:7]")
            a.label("L_pc")
            a("s_lshl_b32 s8, s5, 3"); a("s_add_u32 s8, s8, s3"); a("s_and_b32 s8, s8, 63"); a(f"s_min_u32 s8, s8, {c.np_kb-1}"); a("s_lshl_b32 s8, s8, 10")
            a(f"s_sub_u32 s6, s6, L_pc-{KN}"); a("s_subb_u32 s7, s7, 0")
            a("s_add_u32 s6, s6, s8"); a("s_addc_u32 s7, s7, 0")
            a("v_lshlrev_b32 v3, 4, v1")
            a.vmem("global_load_dwordx4 v[252:255], v3, s[6:7]", "pf")
        a("s_and_b32 s9, s2, 1")
        a("s_lshl_b32 s8, s9, 2"); a("s_sub_u32 s8, 20, s8")
        a("s_cmp_ge_u32 s5, s8")
        a("s_cbranch_scc1 L_roleA")

    def pf_b(self, sE, t0, t1, vt, vd):
        a = self.a
        a(f"s_min_u32 s{t0}, s{sE}, 89")
        a(f"s_mul_i32 s{t1}, s{t0}, 3641"); a(f"s_lshr_b32 s{t1}, s{t1}, 16")
        a(f"s_mul_i32 s59, s{t1}, 18"); a(f"s_sub_u32 s{t0}, s{t0}, s59")
        a(f"s_add_u32 s59, s{t1}, 4"); a(f"s_add_u32 s{t1}, s{t1}, 2"); a(f"s_cmp_ge_u32 s{t1}, 4"); a(f"s_cselect_b32 s{t1}, s59, s{t1}")
        a(f"s_sub_u32 s59, s{t0}, 9"); a(f"s_cmp_ge_u32 s{t0}, 9"); a(f"s_cselect_b32 s{t0}, s59, s{t0}")
        a(f"s_cselect_b32 s6, s{pBim}, s{pBre}"); a(f"s_cselect_b32 s7, s{pBim+1}, s{pBre+1}")
        a(f"s_add_u32 s{t1}, s{t1}, s{t0}"); a(f"s_sub_u32 s59, s{t1}, 9"); a(f"s_cmp_ge_u32 s{t1}, 9"); a(f"s_cselect_b32 s{t1}, s59, s{t1}")
        a(f"s_mul_i32 s{t0}, s{t0}, {64*1152}"); a(f"s_lshl_b32 s{t1}, s{t1}, 7"); a(f"s_add_u32 s{t0}, s{t0}, s{t1}")
        a(f"v_mul_u32_u24 v{vt}, 1152, v1"); a(f"v_add_u32 v{vt}, s{t0}, v{vt}")
        a.vmem(f"global_load_dword v{vd}, v{vt}, s[6:7]", "pf2")

    def pf_s(self, s0, ns, t0, t1, vt, vd, idx=None, optional=False):
        a = self.a; sODD, sNA = self.sODD, self.sNA
        a(f"s_mul_i32 s{t0}, s3, s{sNA}"); a(f"s_add_u32 s{t0}, s{t0}, s5")
        a(f"s_cmp_eq_u32 s{sODD}, 0")
        a(f"s_cselect_b32 s59, {18*ns-1}, {16*ns-1}") if 18 * ns - 1 <= 64 else (a(f"s_movk_i32 s59, {18*ns-1}"), a(f"s_cselect_b32 s59, s59, {16*ns-1}"))
        a(f"s_min_u32 s{t0}, s{t0}, s59")
        a(f"s_cmp_eq_u32 s{sODD}, 0"); a("s_movk_i32 s59, 3641"); a("s_cselect_b32 s59, s59, 0x1000"); a("s_cselect_b32 s79, 18, 16")
        a(f"s_mul_i32 s{t1}, s{t0}, s59"); a(f"s_lshr_b32 s{t1}, s{t1}, 16")
        a(f"s_mul_i32 s59, s{t1}, s79"); a(f"s_sub_u32 s{t0}, s{t0}, s59")
        a(f"s_add_u32 s{t1}, s{t1}, {s0}"); a(f"s_lshl_b32 s{t1}, s{t1}, 7")
        a(f"s_lshr_b32 s79, s79, 1"); a("s_add_u32 s79, s79, 4")
        a(f"s_cmp_lt_u32 s{t0}, s79")
        a(f"s_cselect_b32 s6, s{pBre}, s{pBim}"); a(f"s_cselect_b32 s7, s{pBre+1}, s{pBim+1}"); a("s_cselect_b32 s59, 8, s79")
        a(f"s_sub_u32 s59, s{t0}, s59"); a(f"s_mul_i32 s79, s{sODD}, 5"); a("s_add_u32 s59, s59, s79")
        a(f"s_and_b32 s79, s4, 6"); a(f"s_lshl2_add_u32 s79, s79, s{t0}")
        a(f"s_cmp_lt_u32 s{t0}, 8")
        a(f"s_cselect_b32 s6, s{pX}, s6"); a(f"s_cselect_b32 s7, s{pX+1}, s7"); a(f"s_cselect_b32 s{t0}, s79, s59")
        a(f"s_mul_i32 s{t0}, s{t0}, {64*1152}"); a(f"s_add_u32 s{t0}, s{t0}, s{t1}")
        a(f"v_mul_u32_u24 v{vt}, 1152, v1"); a(f"v_add_u32 v{vt}, s{t0}, v{vt}")
        a.vmem(f"global_load_dword v{vd}, v{vt}, s[6:7]", "pf2", optional=optional)

    def roleB(self):
        a, c = self.a, self.c
        RING, TILE, EXCH = 4096, 0, 151552
        self.inB = True
        sC, sJ, sWM, sWN = 8, 9, 10, 11
        sD, sQ, sWL = 60, 64, 68
        sXCC, sXI, sHB, sCOL = 69, 70, 6, 71
        sCD, sCQ = 72, 76
        sOS, sWS = 44, 80
        sTAG, sCNT, sT0, sT1 = 12, 13, 14, 15
        vDe, vDo, vCe, vCo_ = 4, 5, 246, 247
        vA, vA2, vB, vB2 = 16, 20, 24, 28
        ACC2, R_, I_, FR = 32, 64, 80, 96
        Qr, Qi, W_, XR = 144, 160, 176, 192
        vLam, vNLi, vL16, vCo, vMu, vL256, vL16h, vPre = 216, 218, 220, 222, 224, 226, 230, 232
        vZa, vZb = 236, 237
        vXA = 208
        vP0 = 240
        if c.b_exit: a("s_endpgm")
        a(f"s_mul_i32 s{sT0}, s5, 13"); a(f"s_lshr_b32 s{sT0}, s{sT0}, 6"); a(f"s_lshr_b32 s{sT1}, s5, 2")
        a("s_cmp_eq_u32 s9, 0"); a(f"s_cselect_b32 s{sT0}, s{sT0}, s{sT1}"); a(f"s_cselect_b32 s{sT1}, 5, 4"); a("s_cselect_b32 s58, 0, 5")
        a(f"s_mul_i32 s{sT1}, s{sT1}, s{sT0}"); a(f"s_sub_u32 s{sJ}, s5, s{sT1}"); a(f"s_add_u32 s{sJ}, s{sJ}, s58")
        a(f"s_lshr_b32 s{sC}, s4, 1"); a(f"s_lshl2_add_u32 s{sC}, s{sC}, s{sT0}")
        a(f"s_and_b32 s{sWM}, s3, 3"); a(f"s_lshr_b32 s{sWN}, s3, 2")
        a(f"s_lshl_b32 s{sT0}, s{sC}, 7"); a(f"s_lshl_b32 s{sT1}, s3, 5"); a(f"s_add_u32 s{sT0}, s{sT0}, s{sT1}")
        a(f"s_and_b32 s{sT1}, s3, 1"); a(f"s_lshl_b32 s{sT1}, s{sT1}, 5"); a(f"s_lshl_b32 s58, s{sJ}, 6"); a(f"s_add_u32 s{sT1}, s{sT1}, s58")
        a(f"s_mul_i32 s{sCQ}, s{sT1}, 1152")
        a("s_cmp_lt_u32 s3, 4")
        a(f"s_cselect_b32 s{sT0}, s{sT0}, s{sT1}")
        a(f"s_movk_i32 s{sT1}, 9216"); a(f"s_cselect_b32 s{sT1}, 4608, s{sT1}")
        a("s_cselect_b64 vcc, -1, 0")
        a(f"s_mul_i32 s{sQ}, s{sT0}, 1152")
        for q in range(1, 4): a(f"s_add_u32 s{sQ+q}, s{sQ+q-1}, s{sT1}")
        a(f"s_lshl_b32 s{sWL}, s3, 12")
        if c.rot == "full":
            a(f"s_and_b32 s7, s{sC}, 1"); a(f"s_lshl_b32 s{sCOL}, s7, 2"); a(f"s_add_u32 s{sCOL}, s{sCOL}, s{sJ}")
            a(f"s_sub_u32 s{sT0}, s{sCOL}, 9"); a(f"s_cmp_ge_u32 s{sCOL}, 9"); a(f"s_cselect_b32 s{sCOL}, s{sT0}, s{sCOL}"); a(f"s_lshl_b32 s{sCOL}, s{sCOL}, 7")
            a("s_mul_i32 s7, s7, 5")
        elif c.rot in ("r3", "cc"):
            a(f"s_and_b32 s{sCOL}, s{sC}, 1"); a(f"s_lshl_b32 s{sCOL}, s{sCOL}, 2")
            if c.rot == "r3":
                a(f"s_mul_i32 s{sT0}, s{sJ}, 11"); a(f"s_lshr_b32 s{sT0}, s{sT0}, 5"); a(f"s_mul_i32 s{sT0}, s{sT0}, 3"); a(f"s_sub_u32 s{sT0}, s{sJ}, s{sT0}")
                a(f"s_mul_i32 s{sT0}, s{sT0}, 3"); a(f"s_add_u32 s{sCOL}, s{sCOL}, s{sT0}")
                a(f"s_sub_u32 s{sT0}, s{sCOL}, 9"); a(f"s_cmp_ge_u32 s{sCOL}, 9"); a(f"s_cselect_b32 s{sCOL}, s{sT0}, s{sCOL}")
            a(f"s_sub_i32 s7, s{sJ}, s{sCOL}"); a(f"s_add_u32 s{sT0}, s7, 9"); a("s_cmp_lt_i32 s7, 0"); a(f"s_cselect_b32 s7, s{sT0}, s7")
            a(f"s_lshl_b32 s{sCOL}, s{sCOL}, 7")
        else:
            a(f"s_mov_b32 s{sCOL}, 0"); a(f"s_mov_b32 s7, s{sJ}")
        a("v_lshrrev_b32 v2, 3, v1")
        a("v_and_b32 v3, 3, v2"); a("v_lshrrev_b32 v6, 5, v1"); a("v_lshl_add_u32 v3, v6, 4, v3")
        a("v_cndmask_b32 v3, v2, v3, vcc")
        a("v_mul_u32_u24 v3, 1152, v3")
        a("v_lshrrev_b32 v7, 4, v1"); a("v_xor_b32 v7, v7, v1"); a("v_and_b32 v7, 7, v7"); a("v_lshlrev_b32 v7, 4, v7")
        a(f"v_add_u32 v{vDe}, v7, v3"); a(f"v_xor_b32 v{vDo}, 64, v{vDe}")
        a("s_waitcnt lgkmcnt(0)")
        a("s_cmp_lt_u32 s3, 6")
        a(f"s_cselect_b32 s{sD}, s{pBre}, s{pBim}"); a(f"s_cselect_b32 s{sD+1}, s{pBre+1}, s{pBim+1}")
        a("s_cmp_lt_u32 s3, 4")
        a(f"s_cselect_b32 s{sD}, s{pX}, s{sD}"); a(f"s_cselect_b32 s{sD+1}, s{pX+1}, s{sD+1}")
        a(f"s_mov_b32 s{sD+2}, {BSZ}"); a(f"s_cselect_b32 s{sD+2}, {XSZ}, s{sD+2}")
        a(f"s_mov_b32 s{sD+3}, 0x20000")
        def dma1(s, q):
            if q == 0 and s > 0:
                a(f"s_add_u32 s{sCOL}, s{sCOL}, 128"); a(f"s_cmp_eq_u32 s{sCOL}, 1152"); a(f"s_cselect_b32 s{sCOL}, 0, s{sCOL}")
            a(f"s_add_u32 m0, s{sWL}, {RING + (s % 4) * 32768 + q * 1024}")
            a(f"s_add_u32 s{sT0}, s{sQ+q}, s{sCOL}")
            a.vmem(f"buffer_load_dwordx4 v{vDo if q & 1 else vDe}, s[{sD}:{sD+3}], s{sT0} offen lds", f"st{s}")
        def dmac1(u, q, optional=False):
            const = RING + u * 32768 + q * 1024 - 256 * u
            a(f"s_add_u32 m0, s{sWL}, {const}")
            a.vmem(f"buffer_load_dwordx4 v{vCo_ if q & 1 else vCe}, s[{sCD}:{sCD+3}], s{sCQ+q} offen offset:{256*u} lds", f"cu{u}", optional=optional)
        a("s_lshl_b32 s59, s2, 3"); a("s_add_u32 s59, s59, s3"); a(f"s_sub_u32 s{sCNT}, s59, 7")
        Ln = a.newlabel("L_noep")
        a(f"s_cmp_lg_u32 s{sCNT}, 0"); a(f"s_cbranch_scc1 {Ln}")
        a("v_mov_b32 v8, 0")
        a.vmem(f"global_load_dword v{vP0+5}, v8, {sp(pWs)} sc1", "ep", optional=True)
        a.label(Ln)
        for q in range(4): dma1(0, q)
        a(f"v_mul_u32_u24 v2, 1152, v2"); a(f"v_add_u32 v{vCe}, v7, v2"); a(f"v_xor_b32 v{vCo_}, 64, v{vCe}")
        a(f"s_lshl_b32 s{sT1}, s{sWN}, 5"); a(f"s_add_u32 s58, s58, s{sT1}")
        a("v_and_b32 v7, 31, v1"); a("v_add_u32 v8, s58, v7"); a("v_lshlrev_b32 v8, 1, v8")
        a.vmem(f"global_load_ushort v{vP0}, v8, {sp(pLre)}", "par")
        a.vmem(f"global_load_ushort v{vP0+1}, v8, {sp(pLim)}", "par")
        a.vmem(f"global_load_ushort v{vP0+2}, v8, {sp(pBdt)}", "par")
        for q in range(4): dma1(1, q)
        self.stamp(1)
        a("s_bitcmp1_b32 s3, 1")
        a(f"s_cselect_b32 s{sCD}, s{pCim}, s{pCre}"); a(f"s_cselect_b32 s{sCD+1}, s{pCim+1}, s{pCre+1}")
        a(f"s_mov_b32 s{sCD+2}, {BSZ}"); a(f"s_mov_b32 s{sCD+3}, 0x20000")
        sCOLB, sOWN = 16, 25
        a(f"s_lshl_b32 s{sCOLB+2}, s{sJ}, 7")
        for k in range(1, 9):
            p0, p1 = sCOLB + (2 + k - 1) % 9, sCOLB + (2 + k) % 9
            a(f"s_add_u32 s{p1}, s{p0}, 128"); a(f"s_cmp_eq_u32 s{p1}, 1152"); a(f"s_cselect_b32 s{p1}, 0, s{p1}")
        a(f"s_cmp_eq_u32 s{sWN}, 0")
        for u in range(4): a(f"s_cselect_b32 s{sOWN+u}, s{sCOLB+2*u}, s{sCOLB+2*u+1}")
        for q in range(1, 4): a(f"s_add_u32 s{sCQ+q}, s{sCQ+q-1}, 9216")
        pC2 = 40
        a(f"s_mov_b64 s[40:41], {sp(pCre)}"); a(f"s_mov_b64 s[42:43], {sp(pCim)}")
        srd(a, sWS, pWs, WS_SIZE); srd(a, sOS, pOut, OUTSZ)
        a(f"s_lshl_b32 s{sT0}, s{sC}, 2"); a(f"s_add_u32 s{sT0}, s{sT0}, s{sWM}"); a(f"s_mul_i32 s{sT0}, s{sT0}, 72*1024"); a(f"s_add_u32 s58, s{sT0}, {WS_H}")
        a(f"s_lshl_b32 s{sT0}, s{sJ}, 13"); a(f"s_lshl_b32 s{sT1}, s{sWN}, 12"); a(f"s_add_u32 s{sT0}, s{sT0}, s{sT1}"); a(f"s_add_u32 s{sHB}, s{sT0}, s58")
        if c.pretouch_b == "ld":
            a("v_lshlrev_b32 v2, 7, v7")
            a.vmem(f"buffer_load_dword v248, v2, s[{sWS}:{sWS+3}], s{sHB} offen", "pt")
        if c.pretouch_b == "st":
            a("v_lshlrev_b32 v2, 4, v1")
            for k in range(4): a.vmem(f"buffer_store_dwordx4 v[4:7], v2, s[{sWS}:{sWS+3}], s{sHB} offen offset:{1024*k}", "pt")
        if c.pretouch_b == "st1":
            a("v_lshlrev_b32 v2, 7, v7")
            a.vmem(f"buffer_store_dword v4, v2, s[{sWS}:{sWS+3}], s{sHB} offen", "pt")
        a(f"s_lshl_b32 s{sT0}, s{sJ}, 7"); a(f"v_lshl_add_u32 v9, v7, 1, s{sT0}")
        a.vmem(f"global_load_ushort v{vP0+3}, v9, {sp(pBD)}", "par2")
        a.vmem(f"global_load_ushort v{vP0+4}, v9, {sp(pBD)} offset:64", "par2")
        a("v_lshrrev_b32 v2, 1, v7"); a("v_and_b32 v2, 7, v2"); a("v_xor_b32 v2, v2, v6"); a("v_lshlrev_b32 v2, 4, v2")
        a("v_lshl_add_u32 v2, v7, 7, v2")
        a(f"s_lshl_b32 s{sT0}, s{sWM}, 12"); a(f"s_lshl_b32 s{sT1}, s{sWN}, 12"); a(f"s_add_u32 s{sT1}, s{sT1}, 16384")
        for ks in range(4):
            a(f"v_xor_b32 v3, {32*ks}, v2")
            a(f"v_add_u32 v{vA+ks}, s{sT0}, v3"); a(f"v_add_u32 v{vB+ks}, s{sT1}, v3")
            a(f"v_add_u32 v{vA2+ks}, 0x10000, v{vA+ks}"); a(f"v_add_u32 v{vB2+ks}, 0x10000, v{vB+ks}")
        a("v_bfe_u32 v2, v1, 2, 2")
        a("v_lshl_add_u32 v3, v6, 3, v2"); a("v_lshlrev_b32 v3, 7, v3")
        a("v_lshrrev_b32 v2, 1, v2"); a("v_lshl_add_u32 v2, v6, 2, v2")
        a("v_bfe_u32 v10, v1, 1, 1"); a("v_bfe_u32 v11, v1, 4, 1"); a("v_lshl_add_u32 v10, v11, 1, v10")
        a("v_xor_b32 v2, v2, v10"); a("v_lshl_add_u32 v3, v2, 4, v3")
        a("v_and_b32 v2, 1, v1"); a("v_lshl_add_u32 v3, v2, 3, v3")
        a(f"s_and_b32 s{sT1}, s7, 3"); a(f"s_lshl_b32 s{sT1}, s{sT1}, 15"); a(f"s_add_u32 s{sT0}, s{sT0}, s{sT1}")
        a(f"v_add_u32 v{vXA}, s{sT0}, v3")
        a(f"v_xor_b32 v{vXA+1}, 32, v{vXA}"); a(f"v_xor_b32 v{vXA+2}, 64, v{vXA}"); a(f"v_xor_b32 v{vXA+3}, 96, v{vXA}")

        class Rec:
            def __init__(s_): s_.l = []
            def __call__(s_, t): s_.l.append(t)
        side = Rec()
        side(f"v_lshlrev_b32 v{vP0}, 16, v{vP0}"); side(f"v_lshlrev_b32 v{vP0+1}, 16, v{vP0+1}"); side(f"v_lshlrev_b32 v{vP0+2}, 16, v{vP0+2}")
        side(f"v_mul_f32 v10, {LOG2E}, v{vP0+2}"); side("v_exp_f32 v10, v10")
        side("v_cvt_pk_bf16_f32 v10, v10, v10"); side("v_lshlrev_b32 v10, 16, v10")
        side(f"v_mul_f32 v{vZa}, v10, v{vP0}"); side(f"v_mul_f32 v{vZb}, v10, v{vP0+1}")
        side(f"v_mul_f32 v{vZa}, {LOG2E}, v{vZa}"); side(f"v_mul_f32 v{vZb}, {INV2PI}, v{vZb}")
        cexp(side, vLam, vZa, vZb, None, 10, 11)
        side(f"v_sub_f32 v{vNLi}, 0, v{vLam+1}")
        cexp(side, vL16, vZa, vZb, f2u(16.0), 10, 11)
        early = side; side = Rec()
        side(f"v_mul_f32 v10, v{vP0}, v{vP0}"); side(f"v_fmac_f32 v10, v{vP0+1}, v{vP0+1}"); side("v_rcp_f32 v10, v10")
        side(f"v_add_f32 v11, -1.0, v{vLam}")
        side(f"v_mul_f32 v12, v11, v{vP0}"); side(f"v_fmac_f32 v12, v{vLam+1}, v{vP0+1}")
        side(f"v_mul_f32 v13, v{vLam+1}, v{vP0}"); side(f"v_fma_f32 v13, -v11, v{vP0+1}, v13")
        side("v_add_f32 v10, v10, v10")
        side(f"v_mul_f32 v{vCo}, v12, v10"); side(f"v_mul_f32 v{vCo+1}, v13, v10")
        ncoef = len(side.l)
        cmul(side, 12, vCo, vLam); cmul(side, 14, 12, vLam); cmul(side, 10, vLam, vLam)
        side(f"v_mov_b32 v{Qr}, v12"); side(f"v_mov_b32 v{Qi}, v13"); side(f"v_mov_b32 v{Qr+1}, v14"); side(f"v_mov_b32 v{Qi+1}, v15")
        for r in range(2, 16, 2):
            side(f"v_pk_mul_f32 {vr(Qr+r,2)}, {vr(Qr+r-2,2)}, v[10:11] op_sel:[0,0] op_sel_hi:[1,0]")
            side(f"v_pk_mul_f32 {vr(Qi+r,2)}, {vr(Qi+r-2,2)}, v[10:11] op_sel:[0,0] op_sel_hi:[1,0]")
            side(f"v_pk_fma_f32 {vr(Qr+r,2)}, {vr(Qi+r-2,2)}, v[10:11], {vr(Qr+r,2)} op_sel:[0,1,0] op_sel_hi:[1,1,1] neg_lo:[0,1,0] neg_hi:[0,1,0]")
            side(f"v_pk_fma_f32 {vr(Qi+r,2)}, {vr(Qr+r-2,2)}, v[10:11], {vr(Qi+r,2)} op_sel:[0,1,0] op_sel_hi:[1,1,1]")
        side(f"s_lshl_b32 s{sT0}, s{sWM}, 1"); side(f"v_add_u32 v13, s{sT0}, v6"); side("v_lshlrev_b32 v13, 4, v13"); side("v_cvt_f32_u32 v13, v13")
        cexp(side, vL16h, vZa, vZb, "v13", 10, 11)
        nq = len(side.l)
        cexp(side, vL256, vZa, vZb, f2u(256.0), 10, 11)
        side("v_lshlrev_b32 v13, 7, v6"); side("v_cvt_f32_u32 v13, v13")
        cexp(side, W_, vZa, vZb, "v13", 10, 11)
        for m in range(1, 8): cmul(side, W_ + 2 * m, W_ + 2 * (m - 1), vL256)
        late, side = side, early
        sidepos = [0]
        def emit_side(n):
            for t in side.l[sidepos[0]: sidepos[0] + n]:
                if not c.g1_noside: a(t)
            sidepos[0] += n

        def xtile(s):
            if c.rot == 'full' and s not in (0, 5): return
            Lx = a.newlabel("L_nox")
            a(f"s_cmp_lg_u32 s7, {s}"); a(f"s_cbranch_scc1 {Lx}")
            for dt in range(2):
                for b in range(4):
                    a(f"ds_read_b64_tr_b16 {vr(XR+8*dt+2*b,2)}, v{vXA+2*dt+(b>>1)} offset:{RING+(16*(b&1)+4*(b>>1))*128}")
            a.label(Lx)
        lgq = []
        def readlist(s, half):
            hi = (s % 4) >= 2
            off = RING + (s & 1) * 32768
            A_, B_ = (vA2, vB2) if hi else (vA, vB)
            r = []
            for ks in (2 * half, 2 * half + 1):
                r.append((f"ds_read_b128 {vr(FR+12*ks,4)}, v{A_+ks} offset:{off}", (s, ks, 0)))
                r.append((f"ds_read_b128 {vr(FR+12*ks+4,4)}, v{B_+ks} offset:{off}", (s, ks, 1)))
                r.append((f"ds_read_b128 {vr(FR+12*ks+8,4)}, v{B_+ks} offset:{off+8192}", (s, ks, 2)))
            return r
        def emit_reads(r, n):
            for _ in range(n):
                if r:
                    t, key = r.pop(0); a(t); lgq.append(key)
        def lgwait(key):
            if key in lgq:
                i = lgq.index(key); a(f"s_waitcnt lgkmcnt({len(lgq) - 1 - i})"); del lgq[:i + 1]
        loads = [("x", 2, q, 0) for q in range(4)] + [("x", 3, q, 0) for q in range(4)]
        for st in range(4, 9): loads += [("x", st, q, st - 3) for q in range(4)]
        assert not c.cing1
        for u in c.cing1: loads += [("c", u, q, 5 + u) for q in range(4)]
        def issue(n, passed):
            for _ in range(n):
                if loads and loads[0][3] <= passed:
                    k_, i_, q, _b = loads.pop(0)
                    if c.g1_nodma: a.vm.append((f"st{i_}" if k_ == "x" else f"cu{i_}", True))
                    else: (dma1 if k_ == "x" else dmac1)(i_, q)
        def mfmas(s, half, nxt, passed, nload):
            if not c.g1mix: emit_reads(nxt, 6)
            for kk in range(2):
                ks = 2 * half + kk
                first = (s == 0 and ks == 0)
                lgwait((s, ks, 1))
                a(f"v_mfma_f32_32x32x16_bf16 {vr(R_,16)}, {vr(FR+12*ks,4)}, {vr(FR+12*ks+4,4)}, {'0' if first else vr(R_,16)}")
                emit_reads(nxt, 2)
                lgwait((s, ks, 2))
                a(f"v_mfma_f32_32x32x16_bf16 {vr(I_,16)}, {vr(FR+12*ks,4)}, {vr(FR+12*ks+8,4)}, {'0' if first else vr(I_,16)}")
                emit_reads(nxt, 2 - kk if kk == 0 else 2)
                issue(nload, passed)
        def tagcode():
            a.wait_vm("nonce")
            a(f"v_readfirstlane_b32 s{sTAG}, v{vP0+5}")
            Lok, Lsp = a.newlabel("L_tagok"), a.newlabel("L_tagspin")
            a(f"s_cmp_lg_u32 s{sTAG}, 0"); a(f"s_cbranch_scc1 {Lok}")
            a(f"s_mov_b32 s{sCNT}, {c.spin_max}")
            a("v_mov_b32 v2, 0")
            a.label(Lsp)
            a("s_sleep 1")
            a(f"global_load_dword v{vP0+5}, v2, {sp(pDbg)} sc1")
            a("s_waitcnt vmcnt(0)")
            a(f"v_readfirstlane_b32 s{sTAG}, v{vP0+5}")
            a(f"s_sub_u32 s{sCNT}, s{sCNT}, 1"); a(f"s_cbranch_scc1 {Lok}")
            a(f"s_cmp_eq_u32 s{sTAG}, 0"); a(f"s_cbranch_scc1 {Lsp}")
            a.label(Lok)
            a(f"v_mov_b32 v13, s{sTAG}"); a(f"v_mov_b32 v15, s{sTAG}")
            if c.samexcd:
                a(f"s_getreg_b32 s{sXCC}, hwreg(HW_REG_XCC_ID, 0, 4)")
                Lnx = a.newlabel("L_noxi")
                a("s_cmp_lg_u32 s3, 0"); a(f"s_cbranch_scc1 {Lnx}")
                a("s_mov_b64 exec, 1")
                a(f"s_lshl_b32 s{sT0}, s{sJ}, 3"); a(f"v_mov_b32 v2, s{sT0}"); a(f"v_mov_b32 v12, s{sXCC}")
                a.vmem(f"buffer_store_dwordx2 v[12:13], v2, s[{sWS}:{sWS+3}], s{sXI} offen sc1", "pub", optional=True)
                a("s_mov_b64 exec, -1")
                a.label(Lnx)
        def addrcode():
            a(f"s_lshl_b32 s{sT0}, s{sWN}, 8"); a(f"v_lshl_add_u32 v10, v7, 3, s{sT0}")
            a("v_lshlrev_b32 v11, 1, v10")
            a(f"v_add_u32 v10, {EXCH}, v10")
            a(f"s_lshl_b32 s{sT0}, s{sWM}, 10"); a(f"v_lshl_add_u32 v9, v6, 9, v10"); a(f"v_add_u32 v9, s{sT0}, v9")
            a(f"s_lshl_b32 s{sT0}, s{sJ}, 4"); a(f"s_add_u32 s{sT0}, s{sT0}, s{sC}"); a(f"s_lshl_b32 s59, s{sT0}, 10"); a(f"s_add_u32 s59, s59, {WS_AGG}")
            a(f"s_lshl_b32 s{sXI}, s{sC}, 7"); a(f"s_add_u32 s{sXI}, s{sXI}, {WS_XI}")
            a("v_min_u32 v249, 8, v1"); a("v_lshlrev_b32 v249, 3, v249")

        a(f"s_add_u32 s7, s7, s{sWL}"); a("s_and_b32 s7, s7, 0x400f")
        a.wait_vm("st0")
        a("s_barrier")
        xtile(0)
        emit_reads(readlist(0, 0), 6)
        Ln = a.newlabel("L_noep")
        a(f"s_cmp_lg_u32 s{sCNT}, 0"); a(f"s_cbranch_scc1 {Ln}")
        a("s_mov_b64 exec, 1")
        a(f"v_add_u32 v{vP0+5}, 1, v{vP0+5}"); a(f"v_max_u32 v{vP0+5}, 1, v{vP0+5}"); a("v_mov_b32 v8, 0")
        a.vmem(f"global_store_dword v8, v{vP0+5}, {sp(pDbg)} sc1", "ep2", optional=True)
        a.vmem(f"global_store_dword v8, v{vP0+5}, {sp(pWs)} sc1", "ep2", optional=True)
        a("s_mov_b64 exec, -1")
        a.label(Ln)
        NS = (len(side.l) + 3) // 4
        for s in range(9):
            mfmas(s, 0, readlist(s, 1), s, 2 if s == 0 else 1)
            if s == 0:
                self.stamp(2)
                a.wait_vm("par")
            if s <= 1: emit_side(NS)
            if s == 7: tagcode()
            if s < 8:
                a.wait_vm(f"st{s+1}", extra=" lgkmcnt(0)"); del lgq[:]
                a("s_barrier")
                if c.g1stamps: self.stamp(s + 1, g1=True)
                mfmas(s, 1, readlist(s + 1, 0), s + 1, 2 if s == 0 else 1)
                xtile(s + 1)
            else:
                mfmas(s, 1, [], s, 1)
            if s <= 1: emit_side(NS)
            if s == 4:
                a("v_mov_b32 v2, 0")
                a.vmem(f"global_load_dword v{vP0+5}, v2, {sp(pDbg)} sc1", "nonce")
            if c.own_touch == f"s{s}":
                a("v_lshlrev_b32 v2, 7, v7")
                a.vmem(f"buffer_load_dword v255, v2, s[{sWS}:{sWS+3}], s{sHB} offen{c.touch_fl}", "pt")
            if s == c.pt_stage:
                a("v_lshlrev_b32 v2, 4, v1")
                for k in range(4): a.vmem(f"buffer_store_dwordx4 v[4:7], v2, s[{sWS}:{sWS+3}], s{sHB} offen offset:{1024*k}", "pt")
            if s in c.pfc_spread:
                k = c.pfc_spread.index(s); nl = 72 // len(c.pfc_spread)
                if k == 0:
                    a(f"s_bitcmp1_b32 s{sC}, 0")
                    a(f"s_cselect_b32 s38, s{pC2+2}, s{pC2}"); a(f"s_cselect_b32 s39, s{pC2+3}, s{pC2+1}")
                    a(f"s_mul_i32 s{sT0}, s{sJ}, {64*1152}"); a("s_add_u32 s38, s38, s{0}".format(sT0)); a("s_addc_u32 s39, s39, 0")
                a(f"s_mul_i32 s{sT0}, s3, {nl}"); a(f"s_add_u32 s{sT0}, s{sT0}, {k*8*nl+128}")
                a(f"v_add_u32 v2, s{sT0}, v1"); a("v_and_b32 v3, 63, v2"); a("v_mul_u32_u24 v3, 1152, v3"); a("v_lshrrev_b32 v2, 6, v2")
                a("v_add_u32 v14, -9, v2"); a("v_min_u32 v2, v2, v14"); a("v_lshl_add_u32 v2, v2, 7, v3")
                a(f"s_mov_b64 exec, {(1 << nl) - 1}")
                a.vmem(f"global_load_dword v{248+k}, v2, s[38:39]", "pfc")
                a("s_mov_b64 exec, -1")
            if s == c.pfc_stage and not c.pfc_spread:
                a(f"s_bitcmp1_b32 s{sC}, 0")
                a(f"s_cselect_b32 s38, s{pC2+2}, s{pC2}"); a(f"s_cselect_b32 s39, s{pC2+3}, s{pC2+1}")
                a(f"s_lshl_b32 s{sT0}, s{sJ}, 1"); a(f"s_bfe_u32 s{sT1}, s{sC}, 0x10001"); a(f"s_add_u32 s{sT0}, s{sT0}, s{sT1}"); a(f"s_mul_i32 s{sT0}, s{sT0}, {32*1152}")
                a(f"s_mul_i32 s{sT1}, s3, 36"); a(f"v_add_u32 v2, s{sT1}, v1"); a("v_and_b32 v3, 31, v2"); a("v_mul_u32_u24 v3, 1152, v3")
                a("v_lshrrev_b32 v2, 5, v2"); a("v_lshl_add_u32 v2, v2, 7, v3"); a(f"v_add_u32 v2, s{sT0}, v2")
                a("s_mov_b32 exec_hi, 15")
                a.vmem(f"global_load_dword v251, v2, s[38:39]", "pfc")
                a("s_mov_b32 exec_hi, -1")
            if s == 6:
                addrcode()
                if c.dualflag:
                    a(f"s_lshl2_add_u32 s{sT0}, s{sC}, s{sWM}"); a(f"s_lshl_b32 s{sT0}, s{sT0}, 7"); a(f"s_add_u32 s{sT0}, s{sT0}, {WS_XI}")
                    a("v_mov_b32 v2, 0")
                    a.vmem(f"buffer_load_dword v254, v2, s[{sWS}:{sWS+3}], s{sT0} offen sc1", "ft")
        assert not loads and sidepos[0] >= len(side.l), (loads, sidepos, len(side.l))
        self.stamp(3)
        for r in range(1, 16):
            a(f"v_fmac_f32 v{R_+r}, v{vLam}, v{R_+r-1}"); a(f"v_fmac_f32 v{I_+r}, v{vLam}, v{I_+r-1}")
            a(f"v_fmac_f32 v{R_+r}, v{vNLi}, v{I_+r-1}"); a(f"v_fmac_f32 v{I_+r}, v{vLam+1}, v{R_+r-1}")
        a(f"ds_write2_b32 v9, v{R_+15}, v{I_+15} offset0:0 offset1:1")
        a("s_waitcnt lgkmcnt(0)")
        a("s_barrier")
        EX, G = 128, 96
        for s in range(8): a(f"ds_read_b64 {vr(EX+2*s,2)}, v10 offset:{512*s}")
        for s in range(1, 8):
            a(f"s_waitcnt lgkmcnt({7-s})")
            cfma(a, EX + 2 * s, EX + 2 * (s - 1), vL16)
        Lnp = a.newlabel("L_nopub")
        a(f"s_cmp_lg_u32 s{sWM}, 0"); a(f"s_cbranch_scc1 {Lnp}")
        a(f"v_mov_b32 v12, v{EX+14}"); a(f"v_mov_b32 v14, v{EX+15}")
        a("s_mov_b32 exec_hi, 0")
        a.vmem(f"buffer_store_dwordx4 v[12:15], v11, s[{sWS}:{sWS+3}], s59 offen sc1", "pub", optional=True)
        a("s_mov_b32 exec_hi, -1")
        a.label(Lnp)
        self.stamp(4)
        if c.own_touch == "pub":
            a("v_lshlrev_b32 v2, 7, v7")
            a(f"buffer_load_dword v255, v2, s[{sWS}:{sWS+3}], s{sHB} offen{c.touch_fl}")
        a("s_mov_b32 vcc_lo, 0"); a("s_mov_b32 vcc_hi, -1")
        def aggloads():
            Ldn = a.newlabel("L_aggdone")
            if c.samexcd: a(f"buffer_load_dwordx2 v[250:251], v249, s[{sWS}:{sWS+3}], s{sXI} offen sc1")
            for m in range(8):
                a(f"s_cmp_le_u32 s{sC}, {2*m}"); a(f"s_cbranch_scc1 {Ldn}")
                a(f"s_cmp_eq_u32 s{sC}, {2*m+1}"); a("s_cselect_b32 exec_hi, 0, -1")
                a(f"s_sub_u32 s{sT0}, s59, {(2+2*m)*1024}")
                a(f"buffer_load_dwordx4 {vr(G+4*m,4)}, v248, s[{sWS}:{sWS+3}], s{sT0} offen sc1")
            a.label(Ldn)
            a("s_mov_b32 exec_hi, -1")
        def common(a=a):
            for t in late.l[:ncoef]: a(t)
            for r in range(0, 16, 2):
                a(f"v_pk_mul_f32 v[238:239], {vr(R_+r,2)}, {vr(vCo,2)} op_sel:[0,0] op_sel_hi:[1,0]")
                a(f"v_pk_fma_f32 v[238:239], {vr(I_+r,2)}, {vr(vCo,2)}, v[238:239] op_sel:[0,1,0] op_sel_hi:[1,1,1] neg_lo:[0,1,0] neg_hi:[0,1,0]")
                a(f"v_pk_mul_f32 {vr(I_+r,2)}, {vr(I_+r,2)}, {vr(vCo,2)} op_sel:[0,0] op_sel_hi:[1,0]")
                a(f"v_pk_fma_f32 {vr(I_+r,2)}, {vr(R_+r,2)}, {vr(vCo,2)}, {vr(I_+r,2)} op_sel:[0,1,0] op_sel_hi:[1,1,1]")
                a(f"v_pk_mov_b32 {vr(R_+r,2)}, v[238:239], v[238:239] op_sel:[0,1]")
            for t in late.l[ncoef:nq]: a(t)
            a(f"s_add_u32 s{sT0}, s{sWL}, {RING}")
            a("v_bfe_u32 v8, v1, 1, 2"); a("v_lshlrev_b32 v2, 1, v6"); a("v_xor_b32 v8, v8, v2"); a("v_lshlrev_b32 v8, 4, v8")
            a("v_lshl_add_u32 v8, v7, 6, v8"); a(f"v_add_u32 v8, s{sT0}, v8"); a("v_xor_b32 v5, 16, v8")
            a("v_bfe_u32 v2, v1, 2, 2"); a("v_lshlrev_b32 v9, 6, v2"); a("v_lshl_add_u32 v9, v6, 11, v9")
            a("v_lshrrev_b32 v2, 1, v2"); a("v_bfe_u32 v10, v1, 4, 1"); a("v_lshlrev_b32 v10, 1, v10"); a("v_xor_b32 v2, v2, v10")
            a("v_bfe_u32 v10, v1, 1, 1"); a("v_xor_b32 v2, v2, v10"); a("v_lshl_add_u32 v9, v2, 4, v9")
            a("v_and_b32 v2, 1, v1"); a("v_lshl_add_u32 v9, v2, 3, v9"); a(f"v_add_u32 v9, s{sT0}, v9"); a("v_xor_b32 v10, 32, v9")
            a("v_lshlrev_b32 v4, 4, v1")
            a(f"s_lshl2_add_u32 s{sQ+1}, s{sC}, s{sWM}"); a(f"s_lshl_b32 s{sQ+1}, s{sQ+1}, 7"); a(f"s_add_u32 s{sQ+1}, s{sQ+1}, {WS_FLG}")
            a(f"s_lshl1_add_u32 s{sT1}, s{sJ}, s{sWN}"); a(f"s_lshl_b32 s{sT1}, s{sT1}, 2"); a(f"v_mov_b32 v252, s{sT1}"); a(f"v_mov_b32 v253, s{sTAG}")
        fs = c.flag_stride
        cstride = max(128, 16 * fs)
        a(f"v_add_u32 v245, 4096, v10")
        Lp0, Ljoin = a.newlabel("L_poller"), a.newlabel("L_join")
        a(f"s_cmp_eq_u32 s{sWM}, 0"); a(f"s_cbranch_scc1 {Lp0}")
        Ld = a.newlabel("L_pre")
        for wm in range(1, 4):
            Ln = a.newlabel("L_pre")
            if wm < 3: a(f"s_cmp_lg_u32 s{sWM}, {wm}"); a(f"s_cbranch_scc1 {Ln}")
            for k in range(2): a(f"v_cndmask_b32 v{vPre+k}, v{EX+2*(2*wm-1)+k}, v{EX+2*(2*wm)+k}, vcc")
            if wm < 3: a(f"s_branch {Ld}"); a.label(Ln)
        a.label(Ld)
        def cdma(u, q, dw=0, dcol=0):
            t = [f"s_add_u32 m0, s{sWL}, {RING + u * 32768 + q * 1024 - 4096 * dw - 16384 * dcol}"]
            t.append(f"s_add_u32 s{sQ+2}, s{sCQ+q}, s{sCOLB+2*u if dcol else sOWN+u}")
            if dw: t.append(f"s_sub_u32 s{sQ+2}, s{sQ+2}, {32*1152*dw}")
            t.append(f"buffer_load_dwordx4 v{vCo_ if q & 1 else vCe}, s[{sCD}:{sCD+3}], s{sQ+2} offen lds")
            return t
        rec = Rec(); common(rec)
        def mixed(dmas):
            step = max(1, len(rec.l) // (len(dmas) + 1)); k = 0
            for n_, t in enumerate(rec.l):
                if n_ % step == 0 and k < len(dmas) and not t.startswith("s_"):
                    for x in dmas[k]: a(x)
                    k += 1
                a(t)
            for d_ in dmas[k:]:
                for x in d_: a(x)
        own = [cdma(u, q) for u in c.win1 for q in range(4)]
        Lc1 = a.newlabel("L_c1")
        a(f"s_cmp_eq_u32 s{sWM}, 1"); a(f"s_cbranch_scc1 {Lc1}")
        mixed(own)
        a(f"s_branch {Ljoin}")
        a.label(Lc1)
        mixed(own + [cdma(u, q, dw=1) for u in c.win1 for q in range(4)])
        a(f"s_branch {Ljoin}")
        a.label(Lp0)
        for m in range(8):
            a(f"v_mov_b32 v{G+4*m}, 0"); a(f"v_mov_b32 v{G+4*m+1}, s{sTAG}"); a(f"v_mov_b32 v{G+4*m+2}, 0"); a(f"v_mov_b32 v{G+4*m+3}, s{sTAG}")
        a("v_xor_b32 v2, 1, v6"); a("v_lshl_add_u32 v248, v2, 10, v11")
        for k in range(2): a(f"v_cndmask_b32 v{vPre+k}, 0, v{EX+k}, vcc")
        for t in late.l[nq:]: a(t)
        aggloads()
        common()
        Lp, Lg = a.newlabel("L_aggpoll"), a.newlabel("L_aggok")
        a(f"s_mov_b32 s{sCNT}, {c.spin_max}")
        a.label(Lp)
        a("s_waitcnt vmcnt(0)")
        a(f"v_xor_b32 v2, s{sTAG}, v{G+1}")
        for m in range(8):
            for k in (1, 3):
                if m == 0 and k == 1: continue
                a(f"v_bitop3_b32 v2, v2, v{G+4*m+k}, s{sTAG} bitop3:0xf6")
        if c.samexcd: a(f"v_bitop3_b32 v2, v2, v251, s{sTAG} bitop3:0xf6")
        a("v_cmp_ne_u32 vcc, 0, v2")
        a(f"s_cbranch_vccz {Lg}")
        a(f"s_sub_u32 s{sCNT}, s{sCNT}, 1"); a(f"s_cbranch_scc1 {Lg}")
        aggloads()
        a(f"s_branch {Lp}")
        a.label(Lg)
        for m in range(8):
            acc_ = 12 + 2 * (m & 1); g_ = G + 4 * m; w_ = vr(W_ + 2 * m, 2)
            if m < 2: a(f"v_pk_mul_f32 {vr(acc_,2)}, {vr(g_,2)}, {w_} op_sel:[0,0] op_sel_hi:[0,1]")
            else: a(f"v_pk_fma_f32 {vr(acc_,2)}, {vr(g_,2)}, {w_}, {vr(acc_,2)} op_sel:[0,0,0] op_sel_hi:[0,1,1]")
            a(f"v_pk_fma_f32 {vr(acc_,2)}, {vr(g_+2,2)}, {w_}, {vr(acc_,2)} op_sel:[0,1,0] op_sel_hi:[0,0,1] neg_lo:[0,1,0]")
        a("v_pk_add_f32 v[12:13], v[12:13], v[14:15]")
        a("v_pk_mov_b32 v[14:15], v[12:13], v[12:13] op_sel:[0,1]")
        a("v_permlane32_swap_b32 v12, v14"); a("v_permlane32_swap_b32 v13, v15")
        a("v_pk_add_f32 v[12:13], v[12:13], v[14:15]")
        a("ds_write_b64 v245, v[12:13]")
        if c.samexcd:
            a(f"v_cmp_ne_u32 vcc, s{sXCC}, v250")
            a("s_cmp_lg_u64 vcc, 0"); a("s_cselect_b32 s70, 1, 0"); a("v_mov_b32 v14, s70")
            a(f"v_mov_b32 v2, {EXCH+4096+512}"); a("ds_write_b32 v2, v14")
        a("s_waitcnt lgkmcnt(0)")
        a.label(Ljoin)
        a.vm_reset()
        if c.jstamp: self.stamp(1)
        a("s_barrier")
        self.stamp(5)
        a("ds_read_b64 v[12:13], v245")
        if c.samexcd:
            a(f"v_mov_b32 v2, {EXCH+4096+512}"); a("ds_read_b32 v14, v2")
        a("s_waitcnt lgkmcnt(0)")
        cfma(a, vPre, 12, vL16h)
        if c.samexcd:
            a("v_readfirstlane_b32 s70, v14"); a("s_mov_b32 s71, 0")
        for r in range(0, 16, 2):
            R2, I2, QR, QI, CA = vr(R_+r,2), vr(I_+r,2), vr(Qr+r,2), vr(Qi+r,2), vr(vPre,2)
            a(f"v_pk_fma_f32 {R2}, {QR}, {CA}, {R2} op_sel:[0,0,0] op_sel_hi:[1,0,1]")
            a(f"v_pk_fma_f32 {I2}, {QR}, {CA}, {I2} op_sel:[0,1,0] op_sel_hi:[1,1,1]")
            a(f"v_pk_fma_f32 {R2}, {QI}, {CA}, {R2} op_sel:[0,1,0] op_sel_hi:[1,1,1] neg_lo:[0,1,0] neg_hi:[0,1,0]")
            a(f"v_pk_fma_f32 {I2}, {QI}, {CA}, {I2} op_sel:[0,0,0] op_sel_hi:[1,0,1]")
            a(f"v_cvt_pk_bf16_f32 v{G+r//2}, v{R_+r}, v{R_+r+1}"); a(f"v_cvt_pk_bf16_f32 v{G+8+r//2}, -v{I_+r}, -v{I_+r+1}")
            if r in (6, 14):
                ad = 8 if r == 6 else 5
                a(f"ds_write_b128 v{ad}, {vr(G+(r//8)*4,4)}"); a(f"ds_write_b128 v{ad}, {vr(G+8+(r//8)*4,4)} offset:2048")
        for k in range(4):
            a(f"ds_read_b64_tr_b16 {vr(128+4*k,2)}, v9 offset:{512*k}"); a(f"ds_read_b64_tr_b16 {vr(128+4*k+2,2)}, v10 offset:{512*k+256}")
        for k in range(4):
            a(f"s_waitcnt lgkmcnt({6-2*k})")
            a(f"buffer_store_dwordx4 {vr(128+4*k,4)}, v4, s[{sWS}:{sWS+3}], s{sHB} offen offset:{1024*k} sc1")
        if c.jstamp: self.stamp(2)
        a("s_barrier")
        HR, NH, CFR, vC = 64, 36, 216, 16
        Lsu = a.newlabel("L_nosetup")
        a(f"s_cmp_lg_u32 s{sWN}, 0"); a(f"s_cbranch_scc1 {Lsu}")
        for k in range(4):
            a(f"ds_read_b64_tr_b16 {vr(144+4*k,2)}, v9 offset:{16384+512*k}"); a(f"ds_read_b64_tr_b16 {vr(144+4*k+2,2)}, v10 offset:{16384+512*k+256}")
        for p in range(9): a(f"s_lshl_b32 s{sCOLB+p}, s{sCOLB+p}, 6"); a(f"s_add_u32 s{sCOLB+p}, s{sCOLB+p}, s58")
        a("v_lshrrev_b32 v2, 1, v7"); a("v_and_b32 v2, 7, v2"); a("v_lshlrev_b32 v2, 4, v2")
        a("v_lshl_add_u32 v2, v7, 7, v2"); a("v_lshl_add_u32 v2, v6, 13, v2"); a(f"v_add_u32 v2, {2*16384}, v2")
        for e in range(8): a(f"v_xor_b32 v{vC+e}, {16*e}, v2")
        a(f"s_lshl_b32 s{sT0}, s{sC}, 7"); a(f"s_lshl_b32 s{sT1}, s{sWM}, 5"); a(f"s_add_u32 s{sT0}, s{sT0}, s{sT1}"); a(f"s_mul_i32 s{sT0}, s{sT0}, 4608")
        a(f"s_lshl_b32 s{sT1}, s{sJ}, 8"); a(f"s_add_u32 s{sT0}, s{sT0}, s{sT1}"); a(f"s_add_u32 s{sT0}, s{sT0}, 2304")
        a("v_mul_u32_u24 v2, 18432, v6"); a("v_lshl_add_u32 v9, v7, 2, v2")
        if c.dualflag:
            a("v_min_u32 v2, 17, v7"); a("v_lshlrev_b32 v2, 2, v2"); a(f"v_mul_u32_u24 v3, {WS_XI-WS_FLG}, v6"); a("v_add_u32 v2, v2, v3")
        else:
            a("v_min_u32 v2, 17, v1"); a("v_lshlrev_b32 v2, 2, v2")
        a(f"s_mov_b32 s{sCNT}, {c.spin_max}")
        a(f"v_lshlrev_b32 v{vP0+3}, 16, v{vP0+3}"); a(f"v_lshlrev_b32 v{vP0+4}, 16, v{vP0+4}")
        fl = lambda r: a(f"buffer_load_dword v{r}, v2, s[{sWS}:{sWS+3}], s{sQ+1} offen{c.fl_flags if r == 3 else c.fl_flags2}")
        for dt in range(2):
            for k in range(8):
                d = ACC2 + 16 * dt + 2 * k; x = XR + 8 * dt + k
                a(f"v_lshlrev_b32 v{d}, 16, v{x}"); a(f"v_and_b32 v{d+1}, 0xffff0000, v{x}")
                a(f"v_pk_mul_f32 {vr(d,2)}, {vr(d,2)}, {vr(vP0+2+2*dt,2)} op_sel:[0,{1-dt}] op_sel_hi:[1,{1-dt}]")
                a(f"v_cvt_pk_bf16_f32 v{x}, v{d}, v{d+1}")
                a(f"v_lshlrev_b32 v{d}, 16, v{x}"); a(f"v_and_b32 v{d+1}, 0xffff0000, v{x}")
        a.label(Lsu)
        a("s_waitcnt vmcnt(0) lgkmcnt(0)")
        a("s_mov_b64 exec, 1")
        if c.dualflag:
            a(f"s_add_u32 s{sT1}, s{sQ+1}, {WS_XI-WS_FLG}")
            a(f"buffer_store_dword v253, v252, s[{sWS}:{sWS+3}], s{sT1} offen")
        a(f"buffer_store_dword v253, v252, s[{sWS}:{sWS+3}], s{sQ+1} offen sc1")
        a("s_mov_b64 exec, -1")
        a("s_barrier")
        self.stamp(6)
        Lw = a.newlabel("L_w")
        a(f"s_cmp_eq_u32 s{sWN}, 0"); a(f"s_cbranch_scc1 {Lw}")
        if c.w2delay: a(f"s_sleep {c.w2delay}")
        for u, dcols in ((3, (1, 0)), (4, (1,)), (0, (1, 0))):
            if u in c.win1 or u in c.cing1: continue
            for dcol in dcols:
                for q in range(4):
                    for x in cdma(u, q, dcol=dcol): a(x)
        a("s_waitcnt vmcnt(0)")
        a("s_barrier")
        if c.stamps: self.store_stamps(9, sWS)
        a("s_endpgm")
        a.label(Lw)
        HR, NH, CFR, vC = 64, 36, 216, 16
        order = list(range(16, 72)) + list(range(16))
        cbase = [2]
        def cread(n):
            ks = order[n]; cg, e = ks >> 3, ks & 7
            if e == 0 and cg == 6:
                for k in range(8): a(f"v_add_u32 v{vC+k}, 0x10000, v{vC+k}")
                cbase[0] = 6
            if e == 0 and cg == 0:
                for k in range(8): a(f"v_subrev_u32 v{vC+k}, {6*16384}, v{vC+k}")
                cbase[0] = 0
            off = RING + (cg - cbase[0]) * 16384; d = CFR + 8 * (n % 3)
            a(f"ds_read_b128 {vr(d,4)}, v{vC+e} offset:{off}"); a(f"ds_read_b128 {vr(d+4,4)}, v{vC+e} offset:{off+4096}")
        RING_REGS = list(range(160, 208, 4)) + list(range(64, 128, 4))
        def mm(n, h):
            d = CFR + 8 * (n % 3)
            a(f"v_mfma_f32_32x32x16_bf16 {vr(ACC2,16)}, {vr(h,4)}, {vr(d,4)}, {vr(ACC2,16)}")
            a(f"v_mfma_f32_32x32x16_bf16 {vr(ACC2+16,16)}, {vr(h,4)}, {vr(d+4,4)}, {vr(ACC2+16,16)}")
        cread(0); cread(1)
        for n in range(8):
            if n == 5: fl(3)
            cread(n + 2)
            a("s_waitcnt lgkmcnt(4)")
            mm(n, 128 + 4 * n)
        def pollcode(need):
            Lp, Lg = a.newlabel("L_flpoll"), a.newlabel("L_flok")
            a.label(Lp)
            for r0, r1 in ((3, 5), (5, 3)):
                fl(r1)
                a("s_waitcnt vmcnt(1)")
                a(f"v_cmp_eq_u32 s[70:71], s{sTAG}, v{r0}")
                if c.dualflag: a("s_or_b32 s70, s70, s71")
                a(f"s_andn2_b32 s{sT1}, {need}, s70")
                a(f"s_cbranch_scc0 {Lg}")
                if c.fl_sleep: a(f"s_sleep {c.fl_sleep}")
            a(f"s_sub_u32 s{sCNT}, s{sCNT}, 1"); a(f"s_cbranch_scc0 {Lp}")
            a.label(Lg)
        bit = lambda ks: 1 << (ks >> 2)
        first = (c.g2lead + 3) // 4
        pollcode(sum(bit(order[4 * g]) for g in range(first)) if c.g2check else 0x3ffff)
        self.stamp(7)
        a.vm_reset()
        assert not c.samexcd
        slow = []
        def hreg(n): return RING_REGS[(n - 8) % len(RING_REGS)]
        def hload(n):
            ks = order[n]
            if ks % 8 == 4: a(f"s_add_u32 s59, s{sCOLB + (ks >> 3)}, 4096")
            so = sCOLB + (ks >> 3) if ks % 8 < 4 else 59
            a.vmem(f"buffer_load_dwordx4 {vr(hreg(n),4)}, v4, s[{sWS}:{sWS+3}], s{so} offen offset:{1024*(ks%4)}{c.hload_flags}", f"h{n}")
        LEAD = c.g2lead
        for n in range(8, 8 + LEAD): hload(n)
        TL = 0
        def ostore(dt, r):
            row = (r & 3) + 8 * (r >> 2)
            a(f"s_add_u32 s{sT1}, s{sT0}, {row*4608}")
            if not c.skip_b_store: a(f"buffer_store_dword v{ACC2+16*dt+r}, v9, s[{sOS}:{sOS+3}], s{sT1} offen offset:{128*dt}{c.out_flags_b}")
        for n in range(8, 72):
            if n + 2 == 16 * len(c.win1): a("s_barrier")
            if n + 2 < 72: cread(n + 2)
            a.wait_vm(f"h{n}", extra=f" lgkmcnt({min(4, 2*(71-n))})")
            mm(n, hreg(n))
            if n + LEAD < 72: hload(n + LEAD)
        self.stamp(8)
        for r in range(16):
            if not TL: ostore(0, r)
            ostore(1, r)
        if c.stamps:
            if c.endwait: a("s_waitcnt vmcnt(0)"); self.stamp(1)
            self.store_stamps(9, sWS)
        self.lag(c.lag_b)
        self.span_end(2, [2, 3, 4, 5, 6, 7])
        if c.hold_ns:
            a("s_cmp_lg_u32 s2, 0"); a("s_cbranch_scc1 L_exit")
            a.label("L_hold")
            a("s_memrealtime s[98:99]"); a("s_waitcnt lgkmcnt(0)")
            a("s_sub_u32 s98, s98, s100"); a(f"s_cmp_lt_u32 s98, {c.hold_ns//10}"); a("s_cbranch_scc1 L_hold")
        a("s_endpgm")
        for Ls, Lb, ks in slow:
            a.label(Ls)
            fl(3)
            pollcode(bit(ks))
            a("s_waitcnt vmcnt(0)")
            a(f"s_branch {Lb}")

    def roleA(self):
        a, c = self.a, self.c
        a.vm = [("pf", False)] if c.prefetch else []
        self.inB = False
        PS = 1312
        UB = 0
        UP1, UP2 = 1280, 2624
        ST = 31488
        SW = 16048
        PLO, OLO = (274 * 4, 548 * 4), 4 * 274 * 4
        PHI, OHI, HIOFF, KOFF = PLO, -3 * 274 * 4, 7672 + 3 * 274 * 4, 11888
        def ypl(it, r): return (HIOFF if it >= 2 else 0) + 4 * 136 * (it & 1) + (r & 1) * PLO[0] + (r >> 1) * PLO[1]
        def opl(it, r): return ypl(it, r) + (OHI if it >= 2 else OLO)
        YBASE = [ST + ch * SW for ch in range(4)] + [ST + 4 * SW + k * 2 * SW + 8256 for k in range(2)]
        assert ST + 8 * SW <= LDS_TOTAL
        sD0, sCH, sUS, sOS, sWS = 8, 9, 60, 64, 80
        sT0, sT1, sPASS, sE = 14, 15, 12, 13
        sMID, sLN, sLN2, sODD, sNA, sG = 10, 11, 72, 73, 78, 36
        self.sODD, self.sNA = sODD, sNA
        sKB, sYB, sXW, sXR = 68, 69, 70, 71
        U0 = [224 + 4 * j for j in range(8)]
        P = 20; vDT = 26; vDS = 28
        a.label("L_roleA")
        a("s_sub_u32 s5, s5, s8"); a(f"s_mov_b32 s{sODD}, s9")
        a(f"s_mul_i32 s{sNA}, s9, 3"); a(f"s_add_u32 s{sNA}, s{sNA}, 12"); a(f"s_cmp_ge_u32 s5, s{sNA}"); a("s_cbranch_scc1 L_exit")
        a(f"s_mov_b32 s{sT0}, s5"); a(f"s_lshl_b32 s{sE}, s{sT0}, 3"); a(f"s_add_u32 s{sE}, s{sE}, s3")
        a(f"s_lshr_b32 s{sT1}, s4, 1"); a(f"s_mul_i32 s{sT1}, s{sT1}, 27"); a("s_mul_i32 s59, s9, 12"); a(f"s_add_u32 s{sT1}, s{sT1}, s59")
        a(f"s_mul_i32 s59, s{sT1}, 43"); a("s_lshr_b32 s59, s59, 9"); a(f"s_mov_b32 s{sLN}, s59")
        a(f"s_add_u32 s59, s{sT1}, s{sNA}"); a("s_sub_u32 s59, s59, 1"); a("s_mul_i32 s59, s59, 43"); a(f"s_lshr_b32 s{sLN2}, s59, 9")
        a(f"s_add_u32 s{sT0}, s{sT0}, s{sT1}")
        a(f"s_mov_b32 s{sG}, s{sT0}")
        a(f"s_mul_i32 s{sT1}, s{sT0}, 171"); a(f"s_lshr_b32 s{sT1}, s{sT1}, 9"); a(f"s_mul_i32 s59, s{sT1}, 3"); a(f"s_sub_u32 s{sMID}, s{sT0}, s59")
        a(f"s_lshl_b32 s{sD0}, s{sT1}, 4"); a(f"s_mul_i32 s{sT0}, s{sMID}, 6"); a(f"s_min_u32 s{sT0}, s{sT0}, 10"); a(f"s_add_u32 s{sD0}, s{sD0}, s{sT0}")
        a(f"s_lshr_b32 s{sT0}, s3, 1"); a(f"s_add_u32 s{sT0}, s{sT0}, 2"); a("s_cmp_lt_u32 s3, 4"); a(f"s_cselect_b32 s{sCH}, s3, s{sT0}")
        a(f"s_cselect_b32 s{sPASS}, 2, 1")
        a(f"s_add_u32 s{sT0}, s{sD0}, s{sCH}")
        a(f"s_lshl_b32 s{sT1}, s{sT0}, 8"); a(f"v_lshl_add_u32 v2, v1, 2, s{sT1}")
        a(f"s_lshl_b32 s{sT1}, s{sT0}, 1"); a(f"v_mov_b32 v3, s{sT1}")
        a(f"s_lshl_b32 s{sT1}, s{sD0}, 1"); a(f"v_mov_b32 v35, s{sT1}")
        a("s_waitcnt lgkmcnt(0)")
        for k, p in enumerate((pAre, pAim, pABre, pABim, pACre, pACim)):
            a.vmem(f"global_load_dword v{P+k}, v2, {sp(p)}", "par")
        a.vmem(f"global_load_ushort v{vDT}, v3, {sp(pAdt)}", "par")
        a.vmem(f"global_load_dwordx3 {vr(vDS,3)}, v35, {sp(pAD)}", "par")
        srd(a, sUS, pAu, XSZ); srd(a, sOS, pOut, OUTSZ); srd(a, sWS, pWs, WS_SIZE)
        def pf_u():
            a("v_mul_u32_u24 v2, 1152, v1")
            a(f"s_and_b32 s{sT0}, s{sE}, 31"); a(f"s_mul_i32 s{sT0}, s{sT0}, {64*1152}")
            a(f"s_lshr_b32 s{sT1}, s{sE}, 5"); a(f"s_add_u32 s{sT1}, s{sT1}, s{sLN}"); a(f"s_cmp_gt_u32 s{sT1}, s{sLN2}"); a(f"s_cselect_b32 s{sT0}, {XSZ}, s{sT0}")
            a(f"s_lshl_b32 s{sT1}, s{sT1}, 7"); a(f"s_add_u32 s{sT0}, s{sT0}, s{sT1}")
            a.vmem(f"buffer_load_dword v250, v2, s[{sUS}:{sUS+3}], s{sT0} offen", "pf3")
        def pf_c():
            Lc_ = a.newlabel("L_nopfc")
            a(f"s_cmp_ge_u32 s{sE}, 81"); a(f"s_cbranch_scc1 {Lc_}")
            a("v_lshlrev_b32 v2, 7, v1"); a(f"s_lshl_b32 s{sT0}, s{sE}, 13"); a(f"v_add_u32 v2, s{sT0}, v2")
            a.vmem(f"global_load_dword v249, v2, {sp(pCre)}", "pf3", optional=True)
            a.vmem(f"global_load_dword v248, v2, {sp(pCim)}", "pf3", optional=True)
            a.label(Lc_)
            if c.pretouch:
                Lt_ = a.newlabel("L_nopt")
                a(f"s_cmp_ge_u32 s{sE}, 72"); a(f"s_cbranch_scc1 {Lt_}")
                a("v_lshlrev_b32 v2, 7, v1"); a(f"s_lshl_b32 s{sT0}, s{sE}, 13"); a(f"s_mul_i32 s{sT1}, s4, {8*72*1024}"); a(f"s_add_u32 s{sT0}, s{sT0}, s{sT1}"); a(f"s_add_u32 s{sT0}, s{sT0}, {WS_H}")
                a.vmem(f"buffer_load_dword v247, v2, s[{sWS}:{sWS+3}], s{sT0} offen", "pf3", optional=True)
                a.label(Lt_)
        def pf_m():
            Lm = a.newlabel("L_nopfm")
            a(f"s_cmp_lg_u32 s{sMID}, 1"); a(f"s_cbranch_scc1 {Lm}")
            ns = 9 - c.m_s0
            for k in range((22 * ns + 31) // 32):
                def idx(t0, k=k):
                    a(f"s_sub_u32 s{t0}, s5, 18"); a(f"s_mul_i32 s{t0}, s{t0}, 171"); a(f"s_lshr_b32 s{t0}, s{t0}, 9"); a(f"s_min_u32 s{t0}, s{t0}, 3")
                    a(f"s_lshl2_add_u32 s{t0}, s3, s{t0}"); a(f"s_add_u32 s{t0}, s{t0}, {32*k}")
                self.pf_s(c.m_s0, ns, sT0, sT1, 2, 240 + k, idx=idx, optional=True)
            a.label(Lm)
        def pf_c2(k):
            a(f"s_lshl2_add_u32 s{sT0}, s5, s3")
            if k: a(f"s_lshl2_add_u32 s{sT0}, s{sNA}, s{sT0}")
            a(f"s_cmp_eq_u32 s{sODD}, 0"); a("s_movk_i32 s59, 6554"); a("s_cselect_b32 s59, s59, 0x2000"); a("s_cselect_b32 s79, 10, 8")
            a(f"s_mul_i32 s{sT1}, s{sT0}, s59"); a(f"s_lshr_b32 s{sT1}, s{sT1}, 16")
            a(f"s_mul_i32 s59, s{sT1}, s79"); a(f"s_sub_u32 s{sT0}, s{sT0}, s59")
            a(f"s_min_u32 s{sT1}, s{sT1}, 8"); a(f"s_add_u32 s{sT1}, s{sT1}, 2"); a(f"s_sub_u32 s59, s{sT1}, 9"); a(f"s_min_u32 s{sT1}, s{sT1}, s59"); a(f"s_lshl_b32 s{sT1}, s{sT1}, 7")
            a(f"s_bitcmp1_b32 s{sT0}, 0"); a(f"s_cselect_b32 s6, s{pCim}, s{pCre}"); a(f"s_cselect_b32 s7, s{pCim+1}, s{pCre+1}")
            a(f"s_lshr_b32 s{sT0}, s{sT0}, 1"); a(f"s_mul_i32 s59, s{sODD}, 5"); a(f"s_add_u32 s{sT0}, s{sT0}, s59")
            a(f"s_mul_i32 s{sT0}, s{sT0}, {64*1152}"); a(f"s_add_u32 s{sT0}, s{sT0}, s{sT1}")
            a("v_mul_u32_u24 v2, 1152, v1"); a(f"v_add_u32 v2, s{sT0}, v2")
            a(f"global_load_dword v{4+k}, v2, s[6:7]")
        def touch_small():
            a(f"s_lshl_b32 s{sT0}, s{sG}, 13"); a(f"s_add_u32 s{sT0}, s{sT0}, {WS_AGG}")
            a(f"s_cmp_eq_u32 s{sG}, 18"); a(f"s_cselect_b32 s{sT0}, {WS_FLG}, s{sT0}")
            a(f"s_cmp_gt_u32 s{sG}, 18"); a(f"s_cselect_b32 s{sT0}, {WS_SIZE}, s{sT0}")
            a("s_cmp_lg_u32 s3, 7"); a(f"s_cselect_b32 s{sT0}, {WS_SIZE}, s{sT0}")
            a("v_lshlrev_b32 v2, 7, v1")
            a.vmem(f"buffer_load_dword v243, v2, s[{sWS}:{sWS+3}], s{sT0} offen", "pf3")
        def touch_h(vd, w0=4):
            a(f"s_lshl2_add_u32 s{sT0}, s{sG}, s3"); a(f"s_sub_u32 s{sT0}, s{sT0}, {w0}"); a(f"s_lshl_b32 s{sT0}, s{sT0}, 13"); a(f"s_add_u32 s{sT0}, s{sT0}, {WS_H}")
            a("v_lshlrev_b32 v2, 7, v1")
            a(f"buffer_load_dword v{vd}, v2, s[{sWS}:{sWS+3}], s{sT0} offen{c.touch_fl}")
            a(f"s_add_u32 s{sT0}, s{sT0}, {432*8192}"); a(f"s_cmp_ge_u32 s{sT0}, {WS_H+576*8192}"); a(f"s_cselect_b32 s{sT0}, {WS_SIZE}, s{sT0}")
            a(f"buffer_load_dword v{vd+1}, v2, s[{sWS}:{sWS+3}], s{sT0} offen{c.touch_fl}")
        def touch_m():
            Lm = a.newlabel("L_notm")
            a(f"s_cmp_lg_u32 s{sMID}, 1"); a(f"s_cbranch_scc1 {Lm}")
            a(f"s_mul_i32 s{sT0}, s5, 171"); a(f"s_lshr_b32 s{sT0}, s{sT0}, 9"); a(f"s_lshl3_add_u32 s{sT0}, s{sT0}, s3")
            a("v_lshlrev_b32 v2, 7, v1")
            for r in range(3):
                if r: a(f"s_lshl3_add_u32 s{sT0}, s{sODD}, s{sT0}"); a(f"s_add_u32 s{sT0}, s{sT0}, 32")
                a(f"s_and_b32 s{sT1}, s{sT0}, 15"); a("s_and_b32 s59, s4, 6"); a(f"s_lshl3_add_u32 s{sT1}, s59, s{sT1}"); a(f"s_mul_i32 s{sT1}, s{sT1}, {72*1024}")
                a(f"s_lshr_b32 s59, s{sT0}, 4"); a(f"s_add_u32 s79, s59, s{sODD}"); a(f"s_cmp_ge_u32 s79, 5"); a(f"s_cselect_b32 s{sT1}, {WS_SIZE}, s{sT1}")
                a(f"s_mul_i32 s79, s{sODD}, 5"); a("s_add_u32 s59, s59, s79"); a("s_lshl_b32 s59, s59, 13"); a(f"s_add_u32 s{sT1}, s{sT1}, s59"); a(f"s_add_u32 s{sT1}, s{sT1}, {WS_H}")
                a.vmem(f"buffer_load_dword v{240+r}, v2, s[{sWS}:{sWS+3}], s{sT1} offen{c.touch_fl}", "pf3", optional=True)
            a.label(Lm)
        if c.touch_small: touch_small()
        PFS = {"u": pf_u, "m": pf_m, "h": touch_m, "b": lambda: self.pf_b(sE, sT0, sT1, 2, 251), "c": pf_c,
               "s": lambda: self.pf_s(2, 3, sT0, sT1, 2, 251), "t": lambda: self.pf_s(5, 4, sT0, sT1, 2, 244)}
        if c.tlbwarm:
            a("v_lshlrev_b32 v2, 20, v1")
            a.vmem(f"buffer_load_dword v246, v2, s[{sWS}:{sWS+3}], 0 offen", "pf3")
            a.vmem(f"buffer_load_dword v245, v2, s[{sOS}:{sOS+3}], 0 offen", "pf3")
        for what in c.pf_early:
            PFS[what]()
        self.stamp(1)
        if c.a_exit: a("s_endpgm")
        a("v_and_b32 v31, 255, v0"); a("v_lshrrev_b32 v31, 2, v31"); a("v_and_b32 v32, 3, v0"); a("v_lshl_add_u32 v33, v31, 5, v32")
        a("v_mul_u32_u24 v34, 1152, v33"); a("v_add_u32 v34, v35, v34")
        a("v_lshrrev_b32 v36, 6, v0"); a(f"v_mul_u32_u24 v36, {4*PS}, v36"); a("v_and_b32 v37, 15, v0"); a("v_lshl_add_u32 v36, v37, 4, v36")
        a("v_bfe_u32 v37, v0, 4, 1"); a(f"v_mul_u32_u24 v37, {UP1}, v37"); a("v_add_u32 v36, v36, v37")
        a("v_bfe_u32 v37, v0, 5, 1"); a(f"v_mul_u32_u24 v37, {UP2}, v37"); a("v_add_u32 v36, v36, v37")
        for k in range(4): a(f"v_mov_b32 v{40+k}, 0")
        Lz = a.newlabel("L_noz")
        a("s_cmp_ge_u32 s3, 6"); a(f"s_cbranch_scc1 {Lz}")
        a(f"ds_write_b128 v36, v[40:43] offset:{UB}")
        a.label(Lz)
        a(f"s_mul_i32 s{sT0}, s3, {SW}"); a(f"s_add_u32 s58, s{sT0}, {ST}")
        a(f"s_add_u32 s{sKB}, s58, {KOFF}"); a(f"s_mov_b32 s{sYB}, s58")
        a(f"s_add_u32 s{sXW}, s58, 4160"); a(f"s_add_u32 s{sXR}, s58, 23680")
        Lb = a.newlabel("L_bases")
        a("s_cmp_lt_u32 s3, 4"); a(f"s_cbranch_scc1 {Lb}")
        a(f"s_add_u32 s{sYB}, s58, 8256"); a(f"s_mov_b32 s{sKB}, s58")
        a("s_bitcmp0_b32 s3, 0"); a(f"s_cbranch_scc1 {Lb}")
        a(f"s_add_u32 s{sKB}, s58, {27936-SW}"); a(f"s_sub_u32 s{sYB}, s58, {SW-8256}")
        a(f"s_add_u32 s{sXW}, s58, {23680-SW}"); a(f"s_sub_u32 s{sXR}, s58, {SW-4160}")
        a.label(Lb)
        a("v_lshlrev_b32 v36, 2, v1"); a("v_add_u32 v36, s58, v36")
        a("v_and_b32 v7, 31, v1"); a("v_lshrrev_b32 v3, 5, v1")
        a("v_mul_u32_u24 v37, 272, v7"); a("v_lshl_add_u32 v37, v3, 4, v37"); a("v_add_u32 v37, s58, v37")
        a(f"s_lshl_b32 s{sT0}, s3, 2"); a(f"s_add_u32 s{sT0}, s{sT0}, {ST+8*SW}"); a(f"v_mov_b32 v2, s{sT0}"); a("ds_write_b32 v2, v40")
        F = 64
        for k in range(16): a(f"v_mov_b32 v{F+k}, 0")
        a.wait_vm("par")
        self.stamp(2)
        if c.touch_h == "par":
            Lth = a.newlabel("L_noth")
            a("s_cmp_ge_u32 s3, 4"); a(f"s_cbranch_scc1 {Lth}")
            touch_h(4, 0)
            a.label(Lth)
        for what in c.pf_late:
            PFS[what]()
        a(f"v_lshlrev_b32 v{vDT}, 16, v{vDT}"); a(f"v_mul_f32 v{vDT}, {LOG2E}, v{vDT}"); a(f"v_exp_f32 v{vDT}, v{vDT}")
        a(f"v_cvt_pk_bf16_f32 v{vDT}, v{vDT}, v{vDT}"); a(f"v_lshlrev_b32 v{vDT}, 16, v{vDT}")
        Lh = a.newlabel("L_lo")
        a("s_cmp_lt_u32 s3, 4"); a(f"s_cbranch_scc1 {Lh}")
        a("s_bitcmp0_b32 s3, 0"); a(f"s_cbranch_scc1 {Lh}")
        for k in range(6): a(f"v_lshrrev_b32 v{P+k}, 16, v{P+k}")
        a.label(Lh)
        if c.mid_skip:
            Lms = a.newlabel("L_dopass")
            a("s_cmp_lt_u32 s3, 4"); a(f"s_cbranch_scc1 {Lms}")
            a(f"s_cmp_lg_u32 s{sMID}, 1"); a(f"s_cbranch_scc1 {Lms}")
            for j in range(8):
                a(f"s_mov_b32 s{sT1}, {4608*j}")
                a(f"buffer_load_dwordx3 {vr(U0[j],3)}, v34, s[{sUS}:{sUS+3}], s{sT1} offen")
            a("s_branch L_passdone")
            a.label(Lms)
        E1, E8, E256, V = 40, 42, 44, 96
        T = 46
        a.label("L_pass")
        for k in range(6): a(f"v_lshlrev_b32 v{T+k}, 16, v{P+k}")
        for k in range(6): a(f"v_lshrrev_b32 v{P+k}, 16, v{P+k}")
        a(f"v_mul_f32 v{T}, v{vDT}, v{T}"); a(f"v_mul_f32 v{T+1}, v{vDT}, v{T+1}")
        a(f"v_mul_f32 v{T}, {LOG2E}, v{T}"); a(f"v_mul_f32 v{T+1}, {INV2PI}, v{T+1}")
        cexp(a, E8, T, T + 1, f2u(8.0), T + 8, T + 9)
        cexp(a, E1, T, T + 1, None, T + 6, T + 7)
        cexp(a, E256, T, T + 1, f2u(256.0), T + 8, T + 9)
        cmul(a, T + 6, T + 4, T + 2)
        a(f"v_mul_f32 v{V}, v{vDT}, v{T+6}"); a(f"v_mul_f32 v{V+1}, v{vDT}, v{T+7}")
        rows = {}
        h0 = [0,1,2,3,4,5,6,7, 256,258,260,262,264, 1024,1032]
        h1 = [512,516,520, 768,772,776, 1280,1288, 1536,1544, 1792,1800]
        for r, o in enumerate(h0): rows[o] = (r & 3) + 8 * (r >> 2)
        for r, o in enumerate(h1): rows[o] = (r & 3) + 8 * (r >> 2) + 4
        assert sorted(rows.values()) == list(range(27))
        plan = [(j, j - 1, E1) for j in range(1, 9)]
        for q in range(1, 8): plan.append((256 * q, 256 * (q - 1), E256))
        for q in range(1, 8): plan.append((256 * q + 8, 256 * (q - 1) + 8, E256))
        plan += [(258, 2, E256), (260, 4, E256), (262, 6, E256), (516, 260, E256), (772, 516, E256)]
        reg = {0: V}
        for n_, (o, s_, m_) in enumerate(plan): reg[o] = V + 2 + 2 * n_
        tmpc = [60, 61, 62, 63]
        cnt = [0]
        def xrow(o):
            a(f"v_cvt_pk_bf16_f32 v{tmpc[cnt[0]%4]}, v{reg[o]}, -v{reg[o]+1}")
            a(f"ds_write_b32 v36, v{tmpc[cnt[0]%4]} offset:{272*rows[o]}"); cnt[0] += 1
        def doX(n_):
            o, s_, m_ = plan[n_]
            cmul(a, reg[o], reg[s_], m_)
            if o in rows: xrow(o)
        YA, YBr = 56, 58
        def yrow(col, r_):
            a(f"v_cvt_pk_bf16_f32 v{tmpc[cnt[0]%4]}, v{r_}, v{r_+1}")
            a(f"ds_write_b32 v36, v{tmpc[cnt[0]%4]} offset:{272*(27+col)}"); cnt[0] += 1
        xrow(0)
        a(f"v_mov_b32 v{tmpc[cnt[0]%4]}, 0x3f80"); a(f"ds_write_b32 v36, v{tmpc[cnt[0]%4]} offset:{272*27}"); cnt[0] += 1
        yrow(1, E8)
        cur = E8; nxt = YA
        gpts = c.gather_pts
        for col in range(2, 32):
            cmul(a, nxt, cur, E8); yrow(col, nxt)
            cur = nxt; nxt = YBr if nxt == YA else YA
            if col - 2 < len(plan): doX(col - 2)
            if col in gpts:
                Lg_ = a.newlabel("L_nog")
                a("s_cmp_lt_u32 s3, 4"); a(f"s_cbranch_scc1 {Lg_}")
                k0 = gpts.index(col); n = 8 // len(gpts)
                for j in range(n * k0, n * k0 + n):
                    a(f"s_mov_b32 s{sT1}, {4608*j}")
                    a.vmem(f"buffer_load_dwordx3 {vr(U0[j],3)}, v34, s[{sUS}:{sUS+3}], s{sT1} offen", "u")
                a.label(Lg_)
        FA = 160
        for ks in range(8):
            a(f"ds_read_b128 {vr(FA+8*ks,4)}, v37 offset:{32*ks}")
            a(f"ds_read_b128 {vr(FA+8*ks+4,4)}, v37 offset:{27*272+32*ks}")
        for ks in range(8):
            a(f"s_waitcnt lgkmcnt({14-2*ks})")
            a(f"v_mfma_f32_32x32x16_bf16 {vr(F,16)}, {vr(FA+8*ks,4)}, {vr(FA+8*ks+4,4)}, {vr(F,16)}")
        if c.touch_h == "p1":
            Lth = a.newlabel("L_noth")
            a("s_cmp_ge_u32 s3, 4"); a(f"s_cbranch_scc1 {Lth}")
            a(f"s_cmp_lg_u32 s{sPASS}, 2"); a(f"s_cbranch_scc1 {Lth}")
            touch_h(4, 0)
            a.label(Lth)
        if "c" in c.pf_mid:
            Lc2 = a.newlabel("L_noc2")
            a("s_cmp_ge_u32 s3, 4"); a(f"s_cbranch_scc1 {Lc2}")
            a(f"s_cmp_lg_u32 s{sPASS}, {3 - c.pf_c_pass}"); a(f"s_cbranch_scc1 {Lc2}")
            pf_c2(0); pf_c2(1)
            a.label(Lc2)
        a(f"s_sub_u32 s{sPASS}, s{sPASS}, 1"); a(f"s_cmp_lg_u32 s{sPASS}, 0"); a("s_cbranch_scc1 L_pass")
        a.label("L_passdone")
        self.stamp(3)
        ACC, BF = 128, 96
        def acc(pp, it): return ACC + 32 * it + 16 * pp
        a("v_lshrrev_b32 v2, 5, v1"); a("v_lshlrev_b32 v2, 6, v2")
        a("v_bfe_u32 v3, v1, 2, 2"); a("v_lshl_add_u32 v2, v3, 3, v2")
        a("v_and_b32 v3, 3, v1"); a("v_lshlrev_b32 v3, 3, v3"); a("v_sub_u32 v2, v3, v2")
        a("v_bfe_u32 v3, v1, 4, 1"); a("v_lshl_add_u32 v2, v3, 5, v2")
        a(f"s_add_u32 s{sT0}, s{sKB}, 88"); a(f"v_add_u32 v40, s{sT0}, v2")
        a(f"v_mul_u32_u24 v41, {UP1}, v3"); a("v_and_b32 v2, 15, v1"); a("v_lshrrev_b32 v44, 5, v1"); a("v_add_u32 v42, v2, v44"); a("v_lshl_add_u32 v41, v42, 4, v41")
        a(f"s_mul_i32 s{sT0}, s{sCH}, {4*PS}"); a(f"s_add_u32 s{sT0}, s{sT0}, {UB}"); a(f"v_add_u32 v41, s{sT0}, v41")
        a("v_lshrrev_b32 v42, 2, v2"); a("v_lshlrev_b32 v42, 1, v42"); a("v_lshl_add_u32 v42, v2, 3, v42"); a("v_lshl_add_u32 v42, v3, 2, v42"); a("v_add_u32 v42, v42, v44"); a("v_lshlrev_b32 v42, 2, v42")
        a(f"v_add_u32 v42, s{sYB}, v42")
        a("v_and_b32 v43, 51, v1"); a("v_cmp_eq_u32 vcc, 51, v43"); a("v_mov_b32 v43, 4"); a("v_mov_b32 v44, 12")
        a("v_cndmask_b32 v43, v43, v44, vcc"); a("v_add_u32 v43, v43, v42")
        a("v_cmp_eq_u32 vcc, 63, v1"); a(f"v_mov_b32 v37, {HIOFF+OHI-OLO-4*272}"); a("v_cndmask_b32 v37, 0, v37, vcc"); a("v_add_u32 v37, v37, v43")
        a("v_lshlrev_b32 v39, 4, v1")
        Lf1 = a.newlabel("L_f1")
        a("s_cmp_lt_u32 s3, 4"); a(f"s_cbranch_scc1 {Lf1}")
        a(f"v_add_u32 v2, s{sXW}, v39")
        for k in range(4): a(f"ds_write_b128 v2, {vr(F+4*k,4)} offset:{1024*k}")
        a("s_mov_b32 s6, 0x05040100"); a("s_mov_b32 s7, 0x07060302")
        a("v_and_b32 v38, 1, v32"); a(f"v_mul_u32_u24 v38, {UP1}, v38"); a("v_lshl_add_u32 v38, v31, 4, v38")
        a("v_lshrrev_b32 v3, 1, v32"); a(f"v_mul_u32_u24 v3, {UP2}, v3"); a("v_add_u32 v38, v38, v3")
        a("s_waitcnt vmcnt(0)")
        if c.touch_h == "U": touch_h(4)
        for ch in range(6):
            sel = "s7" if ch & 1 else "s6"; m = ch >> 1; t = 96 + 4 * ch
            for k in range(4): a(f"v_perm_b32 v{t+k}, v{U0[2*k+1]+m}, v{U0[2*k]+m}, {sel}")
            a(f"ds_write_b128 v38, {vr(t,4)} offset:{UB+ch*4*PS+256}")
        a("s_waitcnt lgkmcnt(0)")
        a("s_barrier")
        if c.a_prio: a("s_setprio 1")
        if c.touch_h == "B1": touch_h(4)
        a(f"v_add_u32 v2, s{sXR}, v39")
        for k in range(4): a(f"ds_read_b128 {vr(96+4*k,4)}, v2 offset:{1024*k}")
        a("s_waitcnt lgkmcnt(0)")
        for k in range(15): a(f"v_add_f32 v{F+k}, v{F+k}, v{96+k}")
        a.label(Lf1)
        a(f"s_add_u32 s{sT0}, s{sKB}, 64")
        a(f"v_lshl_add_u32 v2, v7, 4, s{sT0}")
        a("v_and_b32 v3, 1, v1"); a("v_cmp_eq_u32 vcc, 1, v3")
        def blk(b, quad, tb):
            for k, (x, y) in enumerate(quad): a(f"v_cvt_pk_bf16_f32 v{tb+k}, v{x}, v{y}")
            a(f"ds_write_b128 v2, {vr(tb,4)} offset:{512*b}")
        def blk3(b, f0, f8, tb):
            a(f"v_cndmask_b32 v{tb+4}, v{f0}, v{f8}, vcc")
            blk(b, [(f0, f0), (f0, f0), (tb + 4, f8), (f8, f8)], tb)
        a("s_mov_b32 exec_hi, 0")
        blk(0, [(F, F+1), (F+2, F+3), (F+4, F+5), (F+6, F+7)], 96)
        blk(1, [(F+8, F+8), (F+9, F+10), (F+10, F+10), (F+11, F+12)], 104)
        blk3(4, F + 13, F + 14, 112)
        a("s_mov_b32 exec_hi, -1"); a("s_mov_b32 exec_lo, 0")
        blk(2, [(F, F), (F, F+1), (F+1, F+1), (F+2, F+2)], 96)
        blk(3, [(F+3, F+3), (F+3, F+4), (F+4, F+4), (F+5, F+5)], 104)
        blk3(5, F + 6, F + 7, 112); blk3(6, F + 8, F + 9, 120); blk3(7, F + 10, F + 11, 128)
        a("s_mov_b32 exec_hi, 15")
        for k in range(4): a(f"v_mov_b32 v{136+k}, 0")
        a("v_subrev_u32 v2, 64, v2")
        a("ds_write_b128 v2, v[136:139]")
        a("s_mov_b32 exec_hi, 1"); a(f"v_mov_b32 v2, s{sYB}")
        for r in range(3): a(f"ds_write_b32 v2, v136 offset:{opl(0,r)}")
        a("s_mov_b64 exec, -1")

        def conv(its, fill=None, after=None):
            fill = list(fill or [])
            nm = sum(16 * (it + 1) for it in its)
            rate = (len(fill) + 0.0) / max(1, int(nm * c.fill_frac)); credit = [0.0 - c.fill_skip * rate]
            def filler():
                credit[0] += rate
                while fill and credit[0] >= 1.0:
                    t = fill.pop(0); credit[0] -= 1.0
                    a(t)
                    if t.startswith("ds_"): lg.append(("w",))
                    if not fill and after: after(lg)
            AFB = [48, 64]
            qs = sorted({q for it in its for q in range(it + 1)})
            ms = sorted({it - q for it in its for q in range(it + 1)})
            seq = [(rho, pp, m) for rho in range(8) for pp in range(2) for m in ms]
            lg = []
            def bread(n_):
                rho, pp, m = seq[n_]
                if c.cv_nob: return
                a(f"ds_read_b128 {vr(BF+4*(n_%8),4)}, v41 offset:{pp*UP2+256+256*m-32*rho-16}"); lg.append(("b", n_))
            def aread(rho, q):
                if c.cv_noa: return
                for k in range(2):
                    a(f"ds_read_b64_tr_b16 {vr(AFB[rho&1]+4*q+2*k,2)}, v40 offset:{2*(64+64*(rho+8*q)-16*k)-88}"); lg.append(("a", rho, q))
            def waitfor(key):
                if key in lg:
                    idx = max(i for i, k_ in enumerate(lg) if k_ == key)
                    a(f"s_waitcnt lgkmcnt({min(len(lg) - 1 - idx, 15)})")
                    del lg[:idx + 1]
            PF = c.a_pf
            aread(0, qs[0]); bread(0)
            for q in qs[1:]: aread(0, q)
            for n_ in range(1, PF): bread(n_)
            used = set()
            per = len(ms) * 2
            for n_, (rho, pp, m) in enumerate(seq):
                if n_ + PF < len(seq): bread(n_ + PF)
                k_ = n_ - rho * per - 1
                if rho < 7 and 0 <= k_ < len(qs): aread(rho + 1, qs[k_])
                waitfor(("b", n_))
                for it in its:
                    q = it - m
                    if q < 0: continue
                    waitfor(("a", rho, q))
                    d = acc(pp, it); af = AFB[rho & 1] + 4 * q
                    if not c.cv_nomfma: a(f"v_mfma_f32_32x32x16_bf16 {vr(d,16)}, {vr(af,4)}, {vr(BF+4*(n_%8),4)}, {vr(d,16) if d in used else '0'}")
                    used.add(d)
                    filler()
            while fill: credit[0] += 1.0; filler()
        def combine(its, a=a):
            for it in its:
                Pq, Qq = acc(0, it), acc(1, it)
                for bb in range(2):
                    for base in (Pq, Qq):
                        for r in range(4): a(f"v_permlane16_swap_b32 v{base+4*bb+r}, v{base+8+4*bb+r}")
                    A0, A1, A2, A3 = Pq + 4 * bb, Pq + 8 + 4 * bb, Qq + 4 * bb, Qq + 8 + 4 * bb
                    a(f"v_add_f32 v{A0+2}, v{A0+2}, v{A2}"); a(f"v_add_f32 v{A0+3}, v{A0+3}, v{A2+1}")
                    a(f"v_add_f32 v{A0+1}, v{A0+1}, v{A1}")
                    a(f"v_add_f32 v{A1+3}, v{A1+3}, v{A2+2}"); a(f"v_add_f32 v{A2+3}, v{A2+3}, v{A3+2}")
                    a(f"v_add_f32 v{A0+2}, v{A0+2}, v{A1+1}"); a(f"v_add_f32 v{A0+3}, v{A0+3}, v{A1+2}")
                    a(f"v_add_f32 v{A1+3}, v{A1+3}, v{A3+1}"); a(f"v_add_f32 v{A0+3}, v{A0+3}, v{A3}")
                    o = 8 * bb
                    for r in range(4): a(f"ds_write_b32 v42, v{A0+r} offset:{ypl(it,r)+o}")
                    for r, src in enumerate((A1 + 3, A2 + 3, A3 + 3)):
                        if bb == 0: a(f"ds_write_b32 v42, v{src} offset:{opl(it,r)+o+4}")
                        else: a(f"ds_write_b32 v{37 if it == 1 else 43}, v{src} offset:{opl(it,r)+o}")
        def epilogue(R, row0, vtid):
            I0 = row0 // 4
            a(f"v_lshrrev_b32 v2, 2, v{vtid}"); a(f"v_and_b32 v3, 3, v{vtid}")
            if R > 1: a(f"v_lshlrev_b32 v2, {R.bit_length()-1}, v2")
            a("v_lshl_add_u32 v4, v2, 2, v3"); a("v_mul_u32_u24 v4, 4608, v4")
            a("v_and_b32 v6, 1, v3"); a("v_lshrrev_b32 v9, 1, v3")
            a(f"v_mul_u32_u24 v5, {UP1}, v6"); a("v_lshl_add_u32 v5, v2, 1, v5"); a(f"v_mul_u32_u24 v8, {UP2}, v9"); a("v_add_u32 v5, v5, v8")
            a("v_lshrrev_b32 v8, 5, v2"); a("v_lshl_add_u32 v2, v8, 1, v2"); a("v_lshlrev_b32 v2, 2, v2")
            hi = row0 >= 1024
            pl, ob = (PHI, OHI) if hi else (PLO, OLO)
            a(f"v_mul_u32_u24 v8, {pl[0]}, v6"); a("v_add_u32 v2, v2, v8")
            a(f"v_mul_u32_u24 v8, {pl[1]}, v9"); a("v_add_u32 v2, v2, v8")
            yo = HIOFF if hi else 4 * (I0 + 2 * (I0 >> 5))
            a(f"v_add_u32 v2, {ST+yo}, v2"); a(f"v_add_u32 v8, {ob & 0xffffffff}, v2")
            a("v_cmp_eq_u32 vcc, 3, v3"); a("v_cndmask_b32 v8, v8, v2, vcc")
            a("v_cndmask_b32 v9, 1.0, 0, vcc")
            a(f"v_add_u32 v10, {YBASE[4]-ST}, v2"); a(f"v_add_u32 v11, {YBASE[4]-ST}, v8")
            a("v_mov_b32 v12, v4"); a("v_mul_u32_u24 v14, 4596, v6"); a("v_sub_u32 v4, v4, v14")
            a("s_mov_b32 s74, 0x55555555"); a("s_mov_b32 s75, 0x55555555"); a("s_mov_b32 s76, 0xaaaaaaaa"); a("s_mov_b32 s77, 0xaaaaaaaa")
            a(f"s_lshl_b32 s{sT0}, s{sD0}, 2"); a(f"s_add_u32 s{sT0}, s{sT0}, {row0*4608}")
            Y, O, U, S = 64, 96, 128, 144
            def rd(dst, base, off):
                if R == 4: a(f"ds_read_b64 {vr(dst,2)}, v{base} offset:{off}"); a(f"ds_read_b64 {vr(dst+2,2)}, v{base} offset:{off+8}")
                elif R == 2: a(f"ds_read_b64 {vr(dst,2)}, v{base} offset:{off}")
                else: a(f"ds_read_b32 v{dst}, v{base} offset:{off}")
            for ch in range(6):
                uo = UB + ch * 4 * PS + 256 + 2 * I0
                if R == 4: a(f"ds_read_b64 {vr(U+2*ch,2)}, v5 offset:{uo}")
                elif R == 2: a(f"ds_read_b32 v{U+2*ch}, v5 offset:{uo}")
                else: a(f"ds_read_u16 v{U+2*ch}, v5 offset:{uo}")
            for ch in range(6):
                by, bo, off = (2, 8, YBASE[ch] - ST) if ch < 4 else (10, 11, YBASE[ch] - YBASE[4])
                rd(Y + 4 * ch, by, off); rd(O + 4 * ch, bo, off)
            DS = 46
            for ch in range(6):
                if ch & 1: a(f"v_and_b32 v{DS+ch}, 0xffff0000, v{vDS+ch//2}")
                else: a(f"v_lshlrev_b32 v{DS+ch}, 16, v{vDS+ch//2}")
            nrd = 12 * (2 if R == 4 else 1)
            a(f"s_waitcnt lgkmcnt({min(nrd, 15)})")
            if nrd > 15: pass
            for j in range(R):
                for ch in range(6):
                    d = S + 8 * j + ch; u = U + 2 * ch + (j >> 1)
                    if j & 1: a(f"v_and_b32 v{d}, 0xffff0000, v{u}")
                    else: a(f"v_lshlrev_b32 v{d}, 16, v{u}")
                    a(f"v_mul_f32 v{d}, v{d}, v{DS+ch}")
            a("s_waitcnt lgkmcnt(0)")
            for j in range(R):
                for ch in range(6):
                    d = S + 8 * j + ch; y = Y + 4 * ch + j
                    a(f"v_fmac_f32 v{y}, v9, v{O+4*ch+j}")
                    a(f"v_cvt_pk_bf16_f32 v{d}, v{y}, v{d}")
                    a(f"v_lshlrev_b32 v{y}, 16, v{d}"); a(f"v_and_b32 v{d}, 0xffff0000, v{d}")
                    a(f"v_add_f32 v{d}, v{d}, v{y}")
                for ch in range(0, 6, 2):
                    d = S + 8 * j + ch
                    a(f"v_cvt_pk_bf16_f32 v{d+1}, v{d}, v{d+1}")
                    a(f"v_lshlrev_b32 v{d}, 16, v{d+1}"); a(f"v_and_b32 v{d+1}, 0xffff0000, v{d+1}")
                Lm, Le = a.newlabel("L_mid"), a.newlabel("L_ste")
                a(f"s_cmp_eq_u32 s{sMID}, 1"); a(f"s_cbranch_scc1 {Lm}")
                for par in range(2):
                    a(f"s_mov_b64 vcc, s[{74+2*par}:{75+2*par}]")
                    T_ = 176 + 8 * j + 4 * par
                    for k in range(3):
                        own, oth = S + 8 * j + 3 * par + k, S + 8 * j + 3 * (1 - par) + k
                        a(f"v_cndmask_b32_dpp v{T_+k}, v{oth}, v{own}, vcc quad_perm:[1,0,3,2] row_mask:0xf bank_mask:0xf")
                    a(f"s_add_u32 s{sT1}, s{sT0}, {18432*j + 4608*par}")
                    if c.skip_a_store: continue
                    a(f"buffer_store_dwordx3 {vr(T_,3)}, v4, s[{sOS}:{sOS+3}], s{sT1} offen{c.out_flags}")
                a(f"s_branch {Le}")
                a.label(Lm)
                a(f"s_add_u32 s{sT1}, s{sT0}, {18432*j}")
                if not c.skip_a_store: a(f"buffer_store_dwordx4 {vr(S+8*j,4)}, v12, s[{sOS}:{sOS+3}], s{sT1} offen{c.out_flags}")
                a.label(Le)

        Lh0, Lh1, Lhe, Lce = a.newlabel("L_h0"), a.newlabel("L_h1"), a.newlabel("L_he"), a.newlabel("L_ce")
        a("s_cmp_ge_u32 s3, 4"); a(f"s_cbranch_scc1 {Lh0}")
        FLG = ST + 8 * SW
        def signal(val):
            def f(lg=None):
                a(f"v_mov_b32 v45, {val}"); a("ds_write_b32 v38, v45")
                if lg is not None: lg.append(("w",))
            return f
        def await_(vf, vh):
            L, Lo = a.newlabel("L_aw"), a.newlabel("L_awok")
            a(f"s_mov_b32 s{sPASS}, {c.spin_max}")
            a.label(L)
            a("ds_read_b128 v[2:5], v39"); a("ds_read_b128 v[6:9], v39 offset:16")
            a("s_waitcnt lgkmcnt(0)")
            a("v_min3_u32 v2, v2, v3, v4"); a("v_min3_u32 v6, v6, v7, v8"); a("v_min_u32 v2, v2, v5"); a("v_min_u32 v6, v6, v9")
            a(f"v_cmp_gt_u32 vcc, {vf}, v2"); a(f"v_cmp_gt_u32 s[6:7], {vh}, v6"); a("s_or_b64 vcc, vcc, s[6:7]")
            a(f"s_cbranch_vccz {Lo}")
            a("s_sleep 1")
            a(f"s_sub_u32 s{sPASS}, s{sPASS}, 1"); a(f"s_cbranch_scc0 {L}")
            a.label(Lo)
        def rec_combine(its):
            r = []
            combine(its, a=r.append)
            return r
        a(f"s_lshl_b32 s{sT0}, s3, 2"); a(f"s_add_u32 s{sT0}, s{sT0}, {FLG}"); a(f"v_mov_b32 v38, s{sT0}")
        a("s_waitcnt vmcnt(0)")
        a("s_barrier")
        self.stamp(4)
        if c.f_skip:
            signal(2)()
        elif c.f_whole:
            conv([0, 1, 2, 3]); self.stamp(8); combine([0, 1, 2, 3]); signal(2)()
        else:
            if c.f_prio: a("s_setprio 2")
            conv([0, 1])
            if c.f_prio == 1: a("s_setprio 0")
            def sig1(lg):
                signal(1)(lg)
                if c.f_prio == 2: a("s_setprio 0")
            conv([2, 3], fill=rec_combine([0, 1]), after=sig1)
            self.stamp(8)
            combine([2, 3])
        a(f"s_branch {Lce}")
        a.label(Lh0)
        self.stamp(4)
        a(f"s_lshl_b32 s{sT0}, s3, 2"); a(f"s_add_u32 s{sT0}, s{sT0}, {FLG}"); a(f"v_mov_b32 v38, s{sT0}"); a(f"v_mov_b32 v39, {FLG}")
        if c.h_skip: a(f"s_branch {Lhe}")
        a(f"s_cmp_eq_u32 s{sMID}, 1"); a(f"s_cbranch_scc1 {Lhe}")
        a("s_bitcmp1_b32 s3, 0"); a(f"s_cbranch_scc1 {Lh1}")
        conv([0, 3]); combine([0, 3]); a(f"s_branch {Lhe}")
        a.label(Lh1)
        conv([1, 2]); combine([1, 2])
        a.label(Lhe)
        signal(1)()
        if c.a_prio: a("s_setprio 0")
        self.stamp(8)
        a("v_and_b32 v13, 255, v0")
        a("s_waitcnt vmcnt(0)")
        if not c.no_epi1:
            await_(1, 1)
            epilogue(4, 0, 13)
            if c.wbl2 & 1:
                Lq = a.newlabel("L_nowb")
                a(f"s_cmp_lg_u32 s{sE}, 4"); a(f"s_cbranch_scc1 {Lq}")
                a("buffer_wbl2 sc1")
                a.label(Lq)
        a.label(Lce)
        self.stamp(5)
        a("s_waitcnt lgkmcnt(0)")
        a("s_barrier")
        self.stamp(6)
        epilogue(2, 1024, 0)
        self.stamp(7)
        if c.wbl2 & 2:
            Lq = a.newlabel("L_nowb")
            a(f"s_cmp_lg_u32 s{sE}, 5"); a(f"s_cbranch_scc1 {Lq}")
            a("s_waitcnt vmcnt(0)"); a("buffer_wbl2 sc1")
            a.label(Lq)
        if c.stamps and c.endwait: a("s_waitcnt vmcnt(0)"); self.stamp(1)
        if c.stamps: self.store_stamps(9, sWS)
        self.lag(c.lag_a)
        self.span_end(9, [2, 3, 4, 8, 5, 6])
        a.label("L_exit")
        a("s_endpgm")

    def build(self):
        self.prologue(); self.roleB(); self.roleA()
        body = self.a.finalize()
        ref = open(f"cdna_kernels/{NAME}.s.ref").read()
        head = ref[:ref.index("; @launch")]
        return head + f"""; @launch grid=({GRID},1,1) block=(512,1,1) lds={LDS_TOTAL}
.amdgcn_target "amdgcn-amd-amdhsa--gfx950"
.text
.globl {KN}
.p2align 8
.type {KN},@function
{KN}:
{body}
L_codeend:
.if (L_codeend - {KN}) > {self.c.np_kb*1024}
.error "code larger than prefetch window"
.endif
.fill ({self.c.np_kb*1024} - (L_codeend - {KN})) / 4, 4, 0xbf810000
.section .rodata,"a"
.p2align 6
.amdhsa_kernel {KN}
  .amdhsa_next_free_vgpr 256
  .amdhsa_next_free_sgpr 102
  .amdhsa_accum_offset 256
  .amdhsa_group_segment_fixed_size 0
  .amdhsa_kernarg_size 168
  .amdhsa_user_sgpr_count 2
  .amdhsa_user_sgpr_kernarg_segment_ptr 1
  .amdhsa_system_sgpr_workgroup_id_x 1
.end_amdhsa_kernel
"""

if __name__ == "__main__":
    cfg = Cfg()
    out = f"cdna_kernels/{NAME}.s"
    for arg in sys.argv[1:]:
        if arg.startswith("-o="): out = arg[3:]
        else:
            k, v = arg.split("="); setattr(cfg, k, eval(v))
    open(out, "w").write(Gen(cfg).build())
    import subprocess
    r = subprocess.run(["clang", "-x", "assembler", "-target", "amdgcn-amd-amdhsa", "-mcpu=gfx950", "-c", out, "-o", "chk.o"], capture_output=True, text=True)
    print("wrote", out, "OK" if r.returncode == 0 else "ASM ERROR\n" + r.stderr[:2000])
```

```python
import sys, os
sys.path.insert(0, os.path.dirname(os.path.abspath(__file__)))
from asmlib import *

NAME = "concat_heads__ssm_conv_s4__ssm_conv_s5__prompt"
KN = NAME + "_kernel"

DOC = '; ---------------------------------------------------------------------------------------------\n; Role B (144 workgroups, chunk c of 128 steps x slice j of 64 states):\n;   raw = x * [B_re | B_im]^T (MFMA, LDS-DMA ring), local scan in registers, chunk aggregates\n;   convolution as Toeplitz MFMAs on four input phases with shifted accumulators, then\n; ---------------------------------------------------------------------------------------------\n'

class Cfg:
    stamps = False
    flag_stride = 4
    spin_max = 200000
    np_kb = 33
    prefetch = True
    l2pf = True
    samexcd = False
    span = False
    g1stamps = False
    g1_noread = False
    g1_nomfma = False
    g1_nodma = False
    g1_noside = False
    pretouch_b = False
    tlbwarm = False
    jstamp = False
    pt_stage = -1
    cv_nob = False
    cv_noa = False
    cv_nomfma = False
    h_skip = False
    f_skip = False
    f_whole = False
    no_epi1 = False
    m_s0 = 5
    fl_first = 0
    fl_sleep = 2
    lag_a = 0
    lag_b = 0
    hold_ns = 0
    mid_skip = True
    g2check = False
    fl_flags = ' sc1'
    fl_flags2 = ' sc1'
    dualflag = False
    win1 = (1, 2)
    g1mix = True
    spread = False
    w2delay = 0
    g2refresh = 5
    wbl2 = 0
    f_prio = 2
    fill_frac = 0.3
    fill_skip = 3
    pfc_spread = ()
    pfc_stage = 6
    rot = 'none'
    pf_c_pass = 2
    pf_mid = ''
    touch_small = True
    own_touch = ''
    touch_fl = ''
    touch_h = ''
    cing1 = ()
    pf_early = 'st'
    pf_late = 'u'
    gather_pts = (3, 10, 17, 24)
    g2tail = 0
    g2lead = 12
    pretouch = False
    a_prio = True
    a_pf = 5
    clk = False
    hload_flags = ' sc1'
    skip_a_store = False
    skip_b_store = False
    a_exit = False
    b_exit = False
    endwait = False
    out_flags_b = ''
    out_flags = ''

NB, NA = 144, 108
GRID = 255
WS_AGG, WS_FLG, WS_XI, WS_H, WS_STAMP = 0x1000, 0x40000, 0x60000, 0x100000, 0x800000
WS_SIZE = 0x900000
XSZ, BSZ, OUTSZ = 2359296, 663552, 9437184
LDS_TOTAL = 163840
LOG2E = 0x3fb8aa3b
INV2PI = "0.15915494"

pAu, pAre, pAim, pABre, pABim, pACre, pACim, pAdt, pAD, pX, pLre, pLim, pBre, pBim, pCre, pCim, pBdt, pBD, pOut, pDbg, pWs = [16 + 2 * i for i in range(21)]
def sp(p): return f"s[{p}:{p+1}]"
def vr(a, n): return f"v[{a}:{a+n-1}]"

def cmul(a, dst, x, y):
    a(f"v_pk_mul_f32 {vr(dst,2)}, {vr(x,2)}, {vr(y,2)} op_sel:[0,0] op_sel_hi:[0,1]")
    a(f"v_pk_fma_f32 {vr(dst,2)}, {vr(x,2)}, {vr(y,2)}, {vr(dst,2)} op_sel:[1,1,0] op_sel_hi:[1,0,1] neg_lo:[0,1,0]")
def cfma(a, dst, x, y):
    a(f"v_pk_fma_f32 {vr(dst,2)}, {vr(x,2)}, {vr(y,2)}, {vr(dst,2)} op_sel:[0,0,0] op_sel_hi:[0,1,1]")
    a(f"v_pk_fma_f32 {vr(dst,2)}, {vr(x,2)}, {vr(y,2)}, {vr(dst,2)} op_sel:[1,1,0] op_sel_hi:[1,0,1] neg_lo:[0,1,0]")
def cexp(a, dst, va, vb, scale, t0, t1):
    if scale is None:
        a(f"v_exp_f32 v{t0}, v{va}"); a(f"v_fract_f32 v{t1}, v{vb}")
    else:
        a(f"v_mul_f32 v{t0}, {scale}, v{va}"); a(f"v_mul_f32 v{t1}, {scale}, v{vb}")
        a(f"v_exp_f32 v{t0}, v{t0}"); a(f"v_fract_f32 v{t1}, v{t1}")
    a(f"v_cos_f32 v{dst}, v{t1}"); a(f"v_sin_f32 v{dst+1}, v{t1}")
    a(f"v_mul_f32 v{dst}, v{t0}, v{dst}"); a(f"v_mul_f32 v{dst+1}, v{t0}, v{dst+1}")
def f2u(x):
    import struct
    return "0x%08x" % struct.unpack("<I", struct.pack("<f", x))[0]
def srd(a, s, p, size):
    a(f"s_mov_b32 s{s}, s{p}"); a(f"s_mov_b32 s{s+1}, s{p+1}"); a(f"s_mov_b32 s{s+2}, {size}"); a(f"s_mov_b32 s{s+3}, 0x20000")

class Gen:
    def __init__(self, cfg):
        self.c = cfg; self.a = Asm(); self.nst = 0; self.inB = False
    def stamp(self, k, g1=False):
        if self.c.g1stamps and self.inB and not g1 and k != 0: return
        if self.c.stamps or self.c.span: self.a(f"{'s_memtime' if self.c.clk else 's_memrealtime'} s[{84+2*k}:{85+2*k}]")
    def store_stamps(self, n, sWS):
        if not self.c.stamps: return
        a = self.a
        a("s_waitcnt lgkmcnt(0)")
        a("s_lshl_b32 s58, s2, 3"); a("s_add_u32 s58, s58, s3"); a("s_lshl_b32 s58, s58, 6"); a(f"s_add_u32 s58, s58, {WS_STAMP}")
        a("s_mov_b64 exec, 1")
        a("v_mov_b32 v2, 0")
        for k in range(n):
            a(f"v_mov_b32 v3, s{84+2*k}")
            a(f"buffer_store_dword v3, v2, s[{sWS}:{sWS+3}], s58 offen offset:{4*k}")
        a("s_mov_b64 exec, -1")

    def lag(self, ns):
        if not ns: return
        a = self.a; L = a.newlabel("L_lag")
        a("s_waitcnt vmcnt(0)"); a("s_memrealtime s[100:101]"); a("s_waitcnt lgkmcnt(0)")
        a.label(L)
        a("s_sleep 2"); a("s_memrealtime s[98:99]"); a("s_waitcnt lgkmcnt(0)")
        a("s_sub_u32 s98, s98, s100"); a(f"s_cmp_lt_u32 s98, {ns//10}"); a(f"s_cbranch_scc1 {L}")
    def span_end(self, word, ks):
        if not self.c.span: return
        a = self.a
        a("s_mul_i32 s58, s2, 5"); a("s_add_u32 s58, s58, s3"); a("s_and_b32 s58, s58, 15"); a("s_cmp_lg_u32 s58, 0"); a("s_cbranch_scc1 L_exit")
        a("s_waitcnt vmcnt(0)")
        a("s_memrealtime s[58:59]"); a("s_waitcnt lgkmcnt(0)")
        a("s_mov_b64 exec, 1")
        a("s_not_b32 s84, s84")
        a("v_mov_b32 v2, 0"); a("v_mov_b32 v4, s84")
        a(f"global_atomic_umax v2, v4, {sp(pDbg)} offset:4 sc1")
        for i, k in enumerate(ks):
            a(f"v_mov_b32 v{5+i}, s{84+2*k}")
            a(f"global_atomic_umax v2, v{5+i}, {sp(pDbg)} offset:{4*(word+i)} sc1")
        a("v_mov_b32 v3, s58")
        a(f"global_atomic_umax v2, v3, {sp(pDbg)} offset:{4*(word+len(ks))} sc1")

    def prologue(self):
        a, c = self.a, self.c
        self.stamp(0)
        if c.hold_ns: a("s_memrealtime s[100:101]")
        a("s_load_dwordx16 s[16:31], s[0:1], 0")
        a("s_load_dwordx16 s[32:47], s[0:1], 64")
        a("s_load_dwordx8 s[48:55], s[0:1], 128")
        a("s_load_dwordx2 s[56:57], s[0:1], 160")
        a(f"s_cmp_ge_u32 s2, {GRID}")
        a("s_cbranch_scc1 L_exit")
        a("v_lshrrev_b32 v2, 6, v0")
        a("v_and_b32 v1, 63, v0")
        a("v_readfirstlane_b32 s3, v2")
        a("s_and_b32 s4, s2, 7")
        a("s_lshr_b32 s5, s2, 3")
        if c.prefetch:
            a("s_getpc_b64 s[6:7]")
            a.label("L_pc")
            a("s_lshl_b32 s8, s5, 3"); a("s_add_u32 s8, s8, s3"); a("s_and_b32 s8, s8, 63"); a(f"s_min_u32 s8, s8, {c.np_kb-1}"); a("s_lshl_b32 s8, s8, 10")
            a(f"s_sub_u32 s6, s6, L_pc-{KN}"); a("s_subb_u32 s7, s7, 0")
            a("s_add_u32 s6, s6, s8"); a("s_addc_u32 s7, s7, 0")
            a("v_lshlrev_b32 v3, 4, v1")
            a.vmem("global_load_dwordx4 v[252:255], v3, s[6:7]", "pf")
        a("s_and_b32 s9, s2, 1")
        a("s_lshl_b32 s8, s9, 2"); a("s_sub_u32 s8, 20, s8")
        a("s_cmp_ge_u32 s5, s8")
        a("s_cbranch_scc1 L_roleA")

    def pf_b(self, sE, t0, t1, vt, vd):
        a = self.a
        a(f"s_min_u32 s{t0}, s{sE}, 89")
        a(f"s_mul_i32 s{t1}, s{t0}, 3641"); a(f"s_lshr_b32 s{t1}, s{t1}, 16")
        a(f"s_mul_i32 s59, s{t1}, 18"); a(f"s_sub_u32 s{t0}, s{t0}, s59")
        a(f"s_add_u32 s59, s{t1}, 4"); a(f"s_add_u32 s{t1}, s{t1}, 2"); a(f"s_cmp_ge_u32 s{t1}, 4"); a(f"s_cselect_b32 s{t1}, s59, s{t1}")
        a(f"s_sub_u32 s59, s{t0}, 9"); a(f"s_cmp_ge_u32 s{t0}, 9"); a(f"s_cselect_b32 s{t0}, s59, s{t0}")
        a(f"s_cselect_b32 s6, s{pBim}, s{pBre}"); a(f"s_cselect_b32 s7, s{pBim+1}, s{pBre+1}")
        a(f"s_add_u32 s{t1}, s{t1}, s{t0}"); a(f"s_sub_u32 s59, s{t1}, 9"); a(f"s_cmp_ge_u32 s{t1}, 9"); a(f"s_cselect_b32 s{t1}, s59, s{t1}")
        a(f"s_mul_i32 s{t0}, s{t0}, {64*1152}"); a(f"s_lshl_b32 s{t1}, s{t1}, 7"); a(f"s_add_u32 s{t0}, s{t0}, s{t1}")
        a(f"v_mul_u32_u24 v{vt}, 1152, v1"); a(f"v_add_u32 v{vt}, s{t0}, v{vt}")
        a.vmem(f"global_load_dword v{vd}, v{vt}, s[6:7]", "pf2")

    def pf_s(self, s0, ns, t0, t1, vt, vd, idx=None, optional=False):
        a = self.a; sODD, sNA = self.sODD, self.sNA
        a(f"s_mul_i32 s{t0}, s3, s{sNA}"); a(f"s_add_u32 s{t0}, s{t0}, s5")
        a(f"s_cmp_eq_u32 s{sODD}, 0")
        a(f"s_cselect_b32 s59, {18*ns-1}, {16*ns-1}") if 18 * ns - 1 <= 64 else (a(f"s_movk_i32 s59, {18*ns-1}"), a(f"s_cselect_b32 s59, s59, {16*ns-1}"))
        a(f"s_min_u32 s{t0}, s{t0}, s59")
        a(f"s_cmp_eq_u32 s{sODD}, 0"); a("s_movk_i32 s59, 3641"); a("s_cselect_b32 s59, s59, 0x1000"); a("s_cselect_b32 s79, 18, 16")
        a(f"s_mul_i32 s{t1}, s{t0}, s59"); a(f"s_lshr_b32 s{t1}, s{t1}, 16")
        a(f"s_mul_i32 s59, s{t1}, s79"); a(f"s_sub_u32 s{t0}, s{t0}, s59")
        a(f"s_add_u32 s{t1}, s{t1}, {s0}"); a(f"s_lshl_b32 s{t1}, s{t1}, 7")
        a(f"s_lshr_b32 s79, s79, 1"); a("s_add_u32 s79, s79, 4")
        a(f"s_cmp_lt_u32 s{t0}, s79")
        a(f"s_cselect_b32 s6, s{pBre}, s{pBim}"); a(f"s_cselect_b32 s7, s{pBre+1}, s{pBim+1}"); a("s_cselect_b32 s59, 8, s79")
        a(f"s_sub_u32 s59, s{t0}, s59"); a(f"s_mul_i32 s79, s{sODD}, 5"); a("s_add_u32 s59, s59, s79")
        a(f"s_and_b32 s79, s4, 6"); a(f"s_lshl2_add_u32 s79, s79, s{t0}")
        a(f"s_cmp_lt_u32 s{t0}, 8")
        a(f"s_cselect_b32 s6, s{pX}, s6"); a(f"s_cselect_b32 s7, s{pX+1}, s7"); a(f"s_cselect_b32 s{t0}, s79, s59")
        a(f"s_mul_i32 s{t0}, s{t0}, {64*1152}"); a(f"s_add_u32 s{t0}, s{t0}, s{t1}")
        a(f"v_mul_u32_u24 v{vt}, 1152, v1"); a(f"v_add_u32 v{vt}, s{t0}, v{vt}")
        a.vmem(f"global_load_dword v{vd}, v{vt}, s[6:7]", "pf2", optional=optional)

    def roleB(self):
        a, c = self.a, self.c
        RING, TILE, EXCH = 4096, 0, 151552
        self.inB = True
        sC, sJ, sWM, sWN = 8, 9, 10, 11
        sD, sQ, sWL = 60, 64, 68
        sXCC, sXI, sHB, sCOL = 69, 70, 6, 71
        sCD, sCQ = 72, 76
        sOS, sWS = 44, 80
        sTAG, sCNT, sT0, sT1 = 12, 13, 14, 15
        vDe, vDo, vCe, vCo_ = 4, 5, 246, 247
        vA, vA2, vB, vB2 = 16, 20, 24, 28
        ACC2, R_, I_, FR = 32, 64, 80, 96
        Qr, Qi, W_, XR = 144, 160, 176, 192
        vLam, vNLi, vL16, vCo, vMu, vL256, vL16h, vPre = 216, 218, 220, 222, 224, 226, 230, 232
        vZa, vZb = 236, 237
        vXA = 208
        vP0 = 240
        if c.b_exit: a("s_endpgm")
        a(f"s_mul_i32 s{sT0}, s5, 13"); a(f"s_lshr_b32 s{sT0}, s{sT0}, 6"); a(f"s_lshr_b32 s{sT1}, s5, 2")
        a("s_cmp_eq_u32 s9, 0"); a(f"s_cselect_b32 s{sT0}, s{sT0}, s{sT1}"); a(f"s_cselect_b32 s{sT1}, 5, 4"); a("s_cselect_b32 s58, 0, 5")
        a(f"s_mul_i32 s{sT1}, s{sT1}, s{sT0}"); a(f"s_sub_u32 s{sJ}, s5, s{sT1}"); a(f"s_add_u32 s{sJ}, s{sJ}, s58")
        a(f"s_lshr_b32 s{sC}, s4, 1"); a(f"s_lshl2_add_u32 s{sC}, s{sC}, s{sT0}")
        a(f"s_and_b32 s{sWM}, s3, 3"); a(f"s_lshr_b32 s{sWN}, s3, 2")
        a(f"s_lshl_b32 s{sT0}, s{sC}, 7"); a(f"s_lshl_b32 s{sT1}, s3, 5"); a(f"s_add_u32 s{sT0}, s{sT0}, s{sT1}")
        a(f"s_and_b32 s{sT1}, s3, 1"); a(f"s_lshl_b32 s{sT1}, s{sT1}, 5"); a(f"s_lshl_b32 s58, s{sJ}, 6"); a(f"s_add_u32 s{sT1}, s{sT1}, s58")
        a(f"s_mul_i32 s{sCQ}, s{sT1}, 1152")
        a("s_cmp_lt_u32 s3, 4")
        a(f"s_cselect_b32 s{sT0}, s{sT0}, s{sT1}")
        a(f"s_movk_i32 s{sT1}, 9216"); a(f"s_cselect_b32 s{sT1}, 4608, s{sT1}")
        a("s_cselect_b64 vcc, -1, 0")
        a(f"s_mul_i32 s{sQ}, s{sT0}, 1152")
        for q in range(1, 4): a(f"s_add_u32 s{sQ+q}, s{sQ+q-1}, s{sT1}")
        a(f"s_lshl_b32 s{sWL}, s3, 12")
        if c.rot == "full":
            a(f"s_and_b32 s7, s{sC}, 1"); a(f"s_lshl_b32 s{sCOL}, s7, 2"); a(f"s_add_u32 s{sCOL}, s{sCOL}, s{sJ}")
            a(f"s_sub_u32 s{sT0}, s{sCOL}, 9"); a(f"s_cmp_ge_u32 s{sCOL}, 9"); a(f"s_cselect_b32 s{sCOL}, s{sT0}, s{sCOL}"); a(f"s_lshl_b32 s{sCOL}, s{sCOL}, 7")
            a("s_mul_i32 s7, s7, 5")
        elif c.rot in ("r3", "cc"):
            a(f"s_and_b32 s{sCOL}, s{sC}, 1"); a(f"s_lshl_b32 s{sCOL}, s{sCOL}, 2")
            if c.rot == "r3":
                a(f"s_mul_i32 s{sT0}, s{sJ}, 11"); a(f"s_lshr_b32 s{sT0}, s{sT0}, 5"); a(f"s_mul_i32 s{sT0}, s{sT0}, 3"); a(f"s_sub_u32 s{sT0}, s{sJ}, s{sT0}")
                a(f"s_mul_i32 s{sT0}, s{sT0}, 3"); a(f"s_add_u32 s{sCOL}, s{sCOL}, s{sT0}")
                a(f"s_sub_u32 s{sT0}, s{sCOL}, 9"); a(f"s_cmp_ge_u32 s{sCOL}, 9"); a(f"s_cselect_b32 s{sCOL}, s{sT0}, s{sCOL}")
            a(f"s_sub_i32 s7, s{sJ}, s{sCOL}"); a(f"s_add_u32 s{sT0}, s7, 9"); a("s_cmp_lt_i32 s7, 0"); a(f"s_cselect_b32 s7, s{sT0}, s7")
            a(f"s_lshl_b32 s{sCOL}, s{sCOL}, 7")
        else:
            a(f"s_mov_b32 s{sCOL}, 0"); a(f"s_mov_b32 s7, s{sJ}")
        a("v_lshrrev_b32 v2, 3, v1")
        a("v_and_b32 v3, 3, v2"); a("v_lshrrev_b32 v6, 5, v1"); a("v_lshl_add_u32 v3, v6, 4, v3")
        a("v_cndmask_b32 v3, v2, v3, vcc")
        a("v_mul_u32_u24 v3, 1152, v3")
        a("v_lshrrev_b32 v7, 4, v1"); a("v_xor_b32 v7, v7, v1"); a("v_and_b32 v7, 7, v7"); a("v_lshlrev_b32 v7, 4, v7")
        a(f"v_add_u32 v{vDe}, v7, v3"); a(f"v_xor_b32 v{vDo}, 64, v{vDe}")
        a(f"s_lshl_b32 s{sT1}, s{sWN}, 5"); a(f"s_add_u32 s58, s58, s{sT1}")
        a("v_and_b32 v13, 31, v1"); a("v_add_u32 v12, s58, v13"); a("v_lshlrev_b32 v12, 1, v12")
        a("s_waitcnt lgkmcnt(0)")
        a.vmem(f"global_load_ushort v{vP0}, v12, {sp(pLre)}", "par")
        a.vmem(f"global_load_ushort v{vP0+1}, v12, {sp(pLim)}", "par")
        a.vmem(f"global_load_ushort v{vP0+2}, v12, {sp(pBdt)}", "par")
        a("s_cmp_lt_u32 s3, 6")
        a(f"s_cselect_b32 s{sD}, s{pBre}, s{pBim}"); a(f"s_cselect_b32 s{sD+1}, s{pBre+1}, s{pBim+1}")
        a("s_cmp_lt_u32 s3, 4")
        a(f"s_cselect_b32 s{sD}, s{pX}, s{sD}"); a(f"s_cselect_b32 s{sD+1}, s{pX+1}, s{sD+1}")
        a(f"s_mov_b32 s{sD+2}, {BSZ}"); a(f"s_cselect_b32 s{sD+2}, {XSZ}, s{sD+2}")
        a(f"s_mov_b32 s{sD+3}, 0x20000")
        def dma1(s, q):
            if q == 0 and s > 0:
                a(f"s_add_u32 s{sCOL}, s{sCOL}, 128"); a(f"s_cmp_eq_u32 s{sCOL}, 1152"); a(f"s_cselect_b32 s{sCOL}, 0, s{sCOL}")
            a(f"s_add_u32 m0, s{sWL}, {RING + (s % 4) * 32768 + q * 1024}")
            a(f"s_add_u32 s{sT0}, s{sQ+q}, s{sCOL}")
            a.vmem(f"buffer_load_dwordx4 v{vDo if q & 1 else vDe}, s[{sD}:{sD+3}], s{sT0} offen lds", f"st{s}")
        def dmac1(u, q, optional=False):
            a(f"s_add_u32 m0, s{sWL}, {RING + u * 32768 + q * 1024}")
            a(f"s_add_u32 s{sT0}, s{sCQ+q}, s{25+u}")
            a.vmem(f"buffer_load_dwordx4 v{vCo_ if q & 1 else vCe}, s[{sCD}:{sCD+3}], s{sT0} offen lds", f"cu{u}", optional=optional)
        a("s_lshl_b32 s59, s2, 3"); a("s_add_u32 s59, s59, s3"); a(f"s_sub_u32 s{sCNT}, s59, 7")
        Ln = a.newlabel("L_noep")
        a(f"s_cmp_lg_u32 s{sCNT}, 0"); a(f"s_cbranch_scc1 {Ln}")
        a("v_mov_b32 v8, 0")
        a.vmem(f"global_load_dword v{vP0+5}, v8, {sp(pWs)} sc1", "ep", optional=True)
        a.label(Ln)
        for q in range(4): dma1(0, q)
        a(f"v_mul_u32_u24 v2, 1152, v2"); a(f"v_add_u32 v{vCe}, v7, v2"); a(f"v_xor_b32 v{vCo_}, 64, v{vCe}")
        a("v_and_b32 v7, 31, v1")
        for q in range(4): dma1(1, q)
        self.stamp(1)
        a("s_bitcmp1_b32 s3, 1")
        a(f"s_cselect_b32 s{sCD}, s{pCim}, s{pCre}"); a(f"s_cselect_b32 s{sCD+1}, s{pCim+1}, s{pCre+1}")
        a(f"s_mov_b32 s{sCD+2}, {BSZ}"); a(f"s_mov_b32 s{sCD+3}, 0x20000")
        sCOLB, sOWN = 16, 25
        a(f"s_lshl_b32 s{sCOLB+2}, s{sJ}, 7")
        if c.spread:
            a(f"s_sub_u32 s{sT0}, s{sJ}, 5"); a(f"s_min_u32 s{sT0}, s{sT0}, s{sJ}"); a(f"s_lshl_b32 s{sT0}, s{sT0}, 8")
            def step(r): a(f"s_add_u32 s{r}, s{r}, 128"); a(f"s_cmp_eq_u32 s{r}, 1152"); a(f"s_cselect_b32 s{r}, 0, s{r}")
            for k in range(1, 9):
                p1 = sCOLB + (2 + k) % 9
                a(f"s_mov_b32 s{sT1}, s{sT0}"); step(sT1)
                a(f"s_cmp_eq_u32 s{sT0}, s{sCOLB+2}"); a(f"s_cselect_b32 s{p1}, s{sT1}, s{sT0}")
                a(f"s_mov_b32 s{sT0}, s{p1}"); step(sT0)
        else:
            for k in range(1, 9):
                p0, p1 = sCOLB + (2 + k - 1) % 9, sCOLB + (2 + k) % 9
                a(f"s_add_u32 s{p1}, s{p0}, 128"); a(f"s_cmp_eq_u32 s{p1}, 1152"); a(f"s_cselect_b32 s{p1}, 0, s{p1}")
        a(f"s_cmp_eq_u32 s{sWN}, 0")
        for u in range(4): a(f"s_cselect_b32 s{sOWN+u}, s{sCOLB+2*u}, s{sCOLB+2*u+1}")
        for q in range(1, 4): a(f"s_add_u32 s{sCQ+q}, s{sCQ+q-1}, 9216")
        pC2 = 40
        a(f"s_mov_b64 s[40:41], {sp(pCre)}"); a(f"s_mov_b64 s[42:43], {sp(pCim)}")
        srd(a, sWS, pWs, WS_SIZE); srd(a, sOS, pOut, OUTSZ)
        a(f"s_lshl_b32 s{sT0}, s{sC}, 2"); a(f"s_add_u32 s{sT0}, s{sT0}, s{sWM}"); a(f"s_mul_i32 s{sT0}, s{sT0}, 72*1024"); a(f"s_add_u32 s58, s{sT0}, {WS_H}")
        a(f"s_lshl_b32 s{sT0}, s{sJ}, 13"); a(f"s_lshl_b32 s{sT1}, s{sWN}, 12"); a(f"s_add_u32 s{sT0}, s{sT0}, s{sT1}"); a(f"s_add_u32 s{sHB}, s{sT0}, s58")
        if c.pretouch_b == "ld":
            a("v_lshlrev_b32 v2, 7, v7")
            a.vmem(f"buffer_load_dword v248, v2, s[{sWS}:{sWS+3}], s{sHB} offen", "pt")
        if c.pretouch_b == "st":
            a("v_lshlrev_b32 v2, 4, v1")
            for k in range(4): a.vmem(f"buffer_store_dwordx4 v[4:7], v2, s[{sWS}:{sWS+3}], s{sHB} offen offset:{1024*k}", "pt")
        if c.pretouch_b == "st1":
            a("v_lshlrev_b32 v2, 7, v7")
            a.vmem(f"buffer_store_dword v4, v2, s[{sWS}:{sWS+3}], s{sHB} offen", "pt")
        a(f"s_lshl_b32 s{sT0}, s{sJ}, 7"); a(f"v_lshl_add_u32 v9, v7, 1, s{sT0}")
        a.vmem(f"global_load_ushort v{vP0+3}, v9, {sp(pBD)}", "par2")
        a.vmem(f"global_load_ushort v{vP0+4}, v9, {sp(pBD)} offset:64", "par2")
        a("v_lshrrev_b32 v2, 1, v7"); a("v_and_b32 v2, 7, v2"); a("v_xor_b32 v2, v2, v6"); a("v_lshlrev_b32 v2, 4, v2")
        a("v_lshl_add_u32 v2, v7, 7, v2")
        a(f"s_lshl_b32 s{sT0}, s{sWM}, 12"); a(f"s_lshl_b32 s{sT1}, s{sWN}, 12"); a(f"s_add_u32 s{sT1}, s{sT1}, 16384")
        for ks in range(4):
            a(f"v_xor_b32 v3, {32*ks}, v2")
            a(f"v_add_u32 v{vA+ks}, s{sT0}, v3"); a(f"v_add_u32 v{vB+ks}, s{sT1}, v3")
            a(f"v_add_u32 v{vA2+ks}, 0x10000, v{vA+ks}"); a(f"v_add_u32 v{vB2+ks}, 0x10000, v{vB+ks}")
        a("v_bfe_u32 v2, v1, 2, 2")
        a("v_lshl_add_u32 v3, v6, 3, v2"); a("v_lshlrev_b32 v3, 7, v3")
        a("v_lshrrev_b32 v2, 1, v2"); a("v_lshl_add_u32 v2, v6, 2, v2")
        a("v_bfe_u32 v10, v1, 1, 1"); a("v_bfe_u32 v11, v1, 4, 1"); a("v_lshl_add_u32 v10, v11, 1, v10")
        a("v_xor_b32 v2, v2, v10"); a("v_lshl_add_u32 v3, v2, 4, v3")
        a("v_and_b32 v2, 1, v1"); a("v_lshl_add_u32 v3, v2, 3, v3")
        a(f"s_and_b32 s{sT1}, s7, 3"); a(f"s_lshl_b32 s{sT1}, s{sT1}, 15"); a(f"s_add_u32 s{sT0}, s{sT0}, s{sT1}")
        a(f"v_add_u32 v{vXA}, s{sT0}, v3")
        a(f"v_xor_b32 v{vXA+1}, 32, v{vXA}"); a(f"v_xor_b32 v{vXA+2}, 64, v{vXA}"); a(f"v_xor_b32 v{vXA+3}, 96, v{vXA}")

        class Rec:
            def __init__(s_): s_.l = []
            def __call__(s_, t): s_.l.append(t)
        side = Rec()
        side(f"v_lshlrev_b32 v{vP0}, 16, v{vP0}"); side(f"v_lshlrev_b32 v{vP0+1}, 16, v{vP0+1}"); side(f"v_lshlrev_b32 v{vP0+2}, 16, v{vP0+2}")
        side(f"v_mul_f32 v10, {LOG2E}, v{vP0+2}"); side("v_exp_f32 v10, v10")
        side("v_cvt_pk_bf16_f32 v10, v10, v10"); side("v_lshlrev_b32 v10, 16, v10")
        side(f"v_mul_f32 v{vZa}, v10, v{vP0}"); side(f"v_mul_f32 v{vZb}, v10, v{vP0+1}")
        side(f"v_mul_f32 v{vZa}, {LOG2E}, v{vZa}"); side(f"v_mul_f32 v{vZb}, {INV2PI}, v{vZb}")
        cexp(side, vLam, vZa, vZb, None, 10, 11)
        side(f"v_sub_f32 v{vNLi}, 0, v{vLam+1}")
        cexp(side, vL16, vZa, vZb, f2u(16.0), 10, 11)
        early = side; side = Rec()
        side(f"v_mul_f32 v10, v{vP0}, v{vP0}"); side(f"v_fmac_f32 v10, v{vP0+1}, v{vP0+1}"); side("v_rcp_f32 v10, v10")
        side(f"v_add_f32 v11, -1.0, v{vLam}")
        side(f"v_mul_f32 v12, v11, v{vP0}"); side(f"v_fmac_f32 v12, v{vLam+1}, v{vP0+1}")
        side(f"v_mul_f32 v13, v{vLam+1}, v{vP0}"); side(f"v_fma_f32 v13, -v11, v{vP0+1}, v13")
        side("v_add_f32 v10, v10, v10")
        side(f"v_mul_f32 v{vCo}, v12, v10"); side(f"v_mul_f32 v{vCo+1}, v13, v10")
        ncoef = len(side.l)
        cmul(side, 12, vCo, vLam); cmul(side, 14, 12, vLam); cmul(side, 10, vLam, vLam)
        side(f"v_mov_b32 v{Qr}, v12"); side(f"v_mov_b32 v{Qi}, v13"); side(f"v_mov_b32 v{Qr+1}, v14"); side(f"v_mov_b32 v{Qi+1}, v15")
        for r in range(2, 16, 2):
            side(f"v_pk_mul_f32 {vr(Qr+r,2)}, {vr(Qr+r-2,2)}, v[10:11] op_sel:[0,0] op_sel_hi:[1,0]")
            side(f"v_pk_mul_f32 {vr(Qi+r,2)}, {vr(Qi+r-2,2)}, v[10:11] op_sel:[0,0] op_sel_hi:[1,0]")
            side(f"v_pk_fma_f32 {vr(Qr+r,2)}, {vr(Qi+r-2,2)}, v[10:11], {vr(Qr+r,2)} op_sel:[0,1,0] op_sel_hi:[1,1,1] neg_lo:[0,1,0] neg_hi:[0,1,0]")
            side(f"v_pk_fma_f32 {vr(Qi+r,2)}, {vr(Qr+r-2,2)}, v[10:11], {vr(Qi+r,2)} op_sel:[0,1,0] op_sel_hi:[1,1,1]")
        side(f"s_lshl_b32 s{sT0}, s{sWM}, 1"); side(f"v_add_u32 v13, s{sT0}, v6"); side("v_lshlrev_b32 v13, 4, v13"); side("v_cvt_f32_u32 v13, v13")
        cexp(side, vL16h, vZa, vZb, "v13", 10, 11)
        nq = len(side.l)
        cexp(side, vL256, vZa, vZb, f2u(256.0), 10, 11)
        side("v_lshlrev_b32 v13, 7, v6"); side("v_cvt_f32_u32 v13, v13")
        cexp(side, W_, vZa, vZb, "v13", 10, 11)
        for m in range(1, 8): cmul(side, W_ + 2 * m, W_ + 2 * (m - 1), vL256)
        late, side = side, early
        sidepos = [0]
        def emit_side(n):
            for t in side.l[sidepos[0]: sidepos[0] + n]:
                if not c.g1_noside: a(t)
            sidepos[0] += n

        def xtile(s):
            if c.rot == 'full' and s not in (0, 5): return
            Lx = a.newlabel("L_nox")
            a(f"s_cmp_lg_u32 s7, {s}"); a(f"s_cbranch_scc1 {Lx}")
            for dt in range(2):
                for b in range(4):
                    a(f"ds_read_b64_tr_b16 {vr(XR+8*dt+2*b,2)}, v{vXA+2*dt+(b>>1)} offset:{RING+(16*(b&1)+4*(b>>1))*128}")
            a.label(Lx)
        lgq = []
        def readlist(s, half):
            hi = (s % 4) >= 2
            off = RING + (s & 1) * 32768
            A_, B_ = (vA2, vB2) if hi else (vA, vB)
            r = []
            for ks in (2 * half, 2 * half + 1):
                r.append((f"ds_read_b128 {vr(FR+12*ks,4)}, v{A_+ks} offset:{off}", (s, ks, 0)))
                r.append((f"ds_read_b128 {vr(FR+12*ks+4,4)}, v{B_+ks} offset:{off}", (s, ks, 1)))
                r.append((f"ds_read_b128 {vr(FR+12*ks+8,4)}, v{B_+ks} offset:{off+8192}", (s, ks, 2)))
            return r
        def emit_reads(r, n):
            for _ in range(n):
                if r:
                    t, key = r.pop(0); a(t); lgq.append(key)
        def lgwait(key):
            if key in lgq:
                i = lgq.index(key); a(f"s_waitcnt lgkmcnt({len(lgq) - 1 - i})"); del lgq[:i + 1]
        loads = [("x", 2, q, 0) for q in range(4)] + [("x", 3, q, 0) for q in range(4)]
        for st in range(4, 9): loads += [("x", st, q, st - 3) for q in range(4)]
        for u in c.cing1: loads += [("c", u, q, 5 + u) for q in range(4)]
        def issue(n, passed):
            for _ in range(n):
                if loads and loads[0][3] <= passed:
                    k_, i_, q, _b = loads.pop(0)
                    if c.g1_nodma: a.vm.append((f"st{i_}" if k_ == "x" else f"cu{i_}", True))
                    else: (dma1 if k_ == "x" else dmac1)(i_, q)
        def mfmas(s, half, nxt, passed, nload):
            if not c.g1mix: emit_reads(nxt, 6)
            for kk in range(2):
                ks = 2 * half + kk
                first = (s == 0 and ks == 0)
                lgwait((s, ks, 1))
                a(f"v_mfma_f32_32x32x16_bf16 {vr(R_,16)}, {vr(FR+12*ks,4)}, {vr(FR+12*ks+4,4)}, {'0' if first else vr(R_,16)}")
                emit_reads(nxt, 2)
                lgwait((s, ks, 2))
                a(f"v_mfma_f32_32x32x16_bf16 {vr(I_,16)}, {vr(FR+12*ks,4)}, {vr(FR+12*ks+8,4)}, {'0' if first else vr(I_,16)}")
                emit_reads(nxt, 2 - kk if kk == 0 else 2)
                issue(nload, passed)
        def tagcode():
            a.wait_vm("nonce")
            a(f"v_readfirstlane_b32 s{sTAG}, v{vP0+5}")
            Lok, Lsp = a.newlabel("L_tagok"), a.newlabel("L_tagspin")
            a(f"s_cmp_lg_u32 s{sTAG}, 0"); a(f"s_cbranch_scc1 {Lok}")
            a(f"s_mov_b32 s{sCNT}, {c.spin_max}")
            a("v_mov_b32 v2, 0")
            a.label(Lsp)
            a("s_sleep 1")
            a(f"global_load_dword v{vP0+5}, v2, {sp(pDbg)} sc1")
            a("s_waitcnt vmcnt(0)")
            a(f"v_readfirstlane_b32 s{sTAG}, v{vP0+5}")
            a(f"s_sub_u32 s{sCNT}, s{sCNT}, 1"); a(f"s_cbranch_scc1 {Lok}")
            a(f"s_cmp_eq_u32 s{sTAG}, 0"); a(f"s_cbranch_scc1 {Lsp}")
            a.label(Lok)
            a(f"v_mov_b32 v13, s{sTAG}"); a(f"v_mov_b32 v15, s{sTAG}")
            a(f"s_lshl1_add_u32 s{sT1}, s{sJ}, s{sWN}"); a(f"s_lshl_b32 s{sT1}, s{sT1}, 2"); a(f"v_mov_b32 v252, s{sT1}"); a(f"v_mov_b32 v253, s{sTAG}")
            a("v_xor_b32 v2, 1, v6"); a("v_lshl_add_u32 v248, v2, 10, v11")
            a("v_lshlrev_b32 v4, 4, v1")
            Lgi = a.newlabel("L_nogi")
            a(f"s_cmp_lg_u32 s{sWM}, 0"); a(f"s_cbranch_scc1 {Lgi}")
            for m in range(8):
                a(f"v_mov_b32 v{ACC2+4*m}, 0"); a(f"v_mov_b32 v{ACC2+4*m+1}, s{sTAG}"); a(f"v_mov_b32 v{ACC2+4*m+2}, 0"); a(f"v_mov_b32 v{ACC2+4*m+3}, s{sTAG}")
            a.label(Lgi)
            if c.samexcd:
                a(f"s_getreg_b32 s{sXCC}, hwreg(HW_REG_XCC_ID, 0, 4)")
                Lnx = a.newlabel("L_noxi")
                a("s_cmp_lg_u32 s3, 0"); a(f"s_cbranch_scc1 {Lnx}")
                a("s_mov_b64 exec, 1")
                a(f"s_lshl_b32 s{sT0}, s{sJ}, 3"); a(f"v_mov_b32 v2, s{sT0}"); a(f"v_mov_b32 v12, s{sXCC}")
                a.vmem(f"buffer_store_dwordx2 v[12:13], v2, s[{sWS}:{sWS+3}], s{sXI} offen sc1", "pub", optional=True)
                a("s_mov_b64 exec, -1")
                a.label(Lnx)
        def addrcode():
            a(f"s_lshl_b32 s{sT0}, s{sWN}, 8"); a(f"v_lshl_add_u32 v10, v7, 3, s{sT0}")
            a("v_lshlrev_b32 v11, 1, v10")
            a(f"v_add_u32 v10, {EXCH}, v10")
            a(f"s_lshl_b32 s{sT0}, s{sWM}, 10"); a(f"v_lshl_add_u32 v9, v6, 9, v10"); a(f"v_add_u32 v9, s{sT0}, v9")
            a(f"s_lshl_b32 s{sT0}, s{sJ}, 4"); a(f"s_add_u32 s{sT0}, s{sT0}, s{sC}"); a(f"s_lshl_b32 s59, s{sT0}, 10"); a(f"s_add_u32 s59, s59, {WS_AGG}")
            a(f"s_lshl_b32 s{sXI}, s{sC}, 7"); a(f"s_add_u32 s{sXI}, s{sXI}, {WS_XI}")
            a("v_min_u32 v249, 8, v1"); a("v_lshlrev_b32 v249, 3, v249")

        a(f"s_add_u32 s7, s7, s{sWL}"); a("s_and_b32 s7, s7, 0x400f")
        vTW, vTW2, vTR, vTR2, sFL = 212, 213, 214, 215, 30
        a(f"s_add_u32 s{sT0}, s{sWL}, {RING}")
        a("v_bfe_u32 v8, v1, 1, 2"); a("v_lshlrev_b32 v2, 1, v6"); a("v_xor_b32 v8, v8, v2"); a("v_lshlrev_b32 v8, 4, v8")
        a("v_lshl_add_u32 v8, v7, 6, v8"); a(f"v_add_u32 v{vTW}, s{sT0}, v8"); a(f"v_xor_b32 v{vTW2}, 16, v{vTW}")
        a("v_bfe_u32 v2, v1, 2, 2"); a("v_lshlrev_b32 v9, 6, v2"); a("v_lshl_add_u32 v9, v6, 11, v9")
        a("v_lshrrev_b32 v2, 1, v2"); a("v_bfe_u32 v10, v1, 4, 1"); a("v_lshlrev_b32 v10, 1, v10"); a("v_xor_b32 v2, v2, v10")
        a("v_bfe_u32 v10, v1, 1, 1"); a("v_xor_b32 v2, v2, v10"); a("v_lshl_add_u32 v9, v2, 4, v9")
        a("v_and_b32 v2, 1, v1"); a("v_lshl_add_u32 v9, v2, 3, v9"); a(f"v_add_u32 v{vTR}, s{sT0}, v9"); a(f"v_xor_b32 v{vTR2}, 32, v{vTR}")
        a(f"s_lshl2_add_u32 s{sFL}, s{sC}, s{sWM}"); a(f"s_lshl_b32 s{sFL}, s{sFL}, 7"); a(f"s_add_u32 s{sFL}, s{sFL}, {WS_FLG}")
        a.wait_vm("par")
        for t in side.l + late.l: a(t)
        a.wait_vm("st0")
        a("s_barrier")
        xtile(0)
        emit_reads(readlist(0, 0), 6)
        Ln = a.newlabel("L_noep")
        a(f"s_cmp_lg_u32 s{sCNT}, 0"); a(f"s_cbranch_scc1 {Ln}")
        a("s_mov_b64 exec, 1")
        a(f"v_add_u32 v{vP0+5}, 1, v{vP0+5}"); a(f"v_max_u32 v{vP0+5}, 1, v{vP0+5}"); a("v_mov_b32 v8, 0")
        a.vmem(f"global_store_dword v8, v{vP0+5}, {sp(pDbg)} sc1", "ep2", optional=True)
        a.vmem(f"global_store_dword v8, v{vP0+5}, {sp(pWs)} sc1", "ep2", optional=True)
        a("s_mov_b64 exec, -1")
        a.label(Ln)
        NS = (len(side.l) + 3) // 4
        for s in range(9):
            mfmas(s, 0, readlist(s, 1), s, 2 if s == 0 else 1)
            if s == 0:
                self.stamp(2)
            if s == 7: tagcode()
            if s < 8:
                a.wait_vm(f"st{s+1}", extra=" lgkmcnt(0)"); del lgq[:]
                a("s_barrier")
                if c.g1stamps: self.stamp(s + 1, g1=True)
                mfmas(s, 1, readlist(s + 1, 0), s + 1, 2 if s == 0 else 1)
                xtile(s + 1)
            else:
                mfmas(s, 1, [], s, 1)
            if s == 4:
                a("v_mov_b32 v2, 0")
                a.vmem(f"global_load_dword v{vP0+5}, v2, {sp(pDbg)} sc1", "nonce")
            if c.own_touch == f"s{s}":
                a("v_lshlrev_b32 v2, 7, v7")
                a.vmem(f"buffer_load_dword v255, v2, s[{sWS}:{sWS+3}], s{sHB} offen{c.touch_fl}", "pt")
            if s == c.pt_stage:
                a("v_lshlrev_b32 v2, 4, v1")
                for k in range(4): a.vmem(f"buffer_store_dwordx4 v[4:7], v2, s[{sWS}:{sWS+3}], s{sHB} offen offset:{1024*k}", "pt")
            if s in c.pfc_spread:
                k = c.pfc_spread.index(s); nl = 72 // len(c.pfc_spread)
                if k == 0:
                    a(f"s_bitcmp1_b32 s{sC}, 0")
                    a(f"s_cselect_b32 s38, s{pC2+2}, s{pC2}"); a(f"s_cselect_b32 s39, s{pC2+3}, s{pC2+1}")
                    a(f"s_mul_i32 s{sT0}, s{sJ}, {64*1152}"); a("s_add_u32 s38, s38, s{0}".format(sT0)); a("s_addc_u32 s39, s39, 0")
                a(f"s_mul_i32 s{sT0}, s3, {nl}"); a(f"s_add_u32 s{sT0}, s{sT0}, {k*8*nl+128}")
                a(f"v_add_u32 v2, s{sT0}, v1"); a("v_and_b32 v3, 63, v2"); a("v_mul_u32_u24 v3, 1152, v3"); a("v_lshrrev_b32 v2, 6, v2")
                a("v_add_u32 v14, -9, v2"); a("v_min_u32 v2, v2, v14"); a("v_lshl_add_u32 v2, v2, 7, v3")
                a(f"s_mov_b64 exec, {(1 << nl) - 1}")
                a.vmem(f"global_load_dword v{248+k}, v2, s[38:39]", "pfc")
                a("s_mov_b64 exec, -1")
            if s == c.pfc_stage and not c.pfc_spread:
                a(f"s_bitcmp1_b32 s{sC}, 0")
                a(f"s_cselect_b32 s38, s{pC2+2}, s{pC2}"); a(f"s_cselect_b32 s39, s{pC2+3}, s{pC2+1}")
                a(f"s_lshl_b32 s{sT0}, s{sJ}, 1"); a(f"s_bfe_u32 s{sT1}, s{sC}, 0x10001"); a(f"s_add_u32 s{sT0}, s{sT0}, s{sT1}"); a(f"s_mul_i32 s{sT0}, s{sT0}, {32*1152}")
                a(f"s_mul_i32 s{sT1}, s3, 36"); a(f"v_add_u32 v2, s{sT1}, v1"); a("v_and_b32 v3, 31, v2"); a("v_mul_u32_u24 v3, 1152, v3")
                a("v_lshrrev_b32 v2, 5, v2"); a("v_lshl_add_u32 v2, v2, 7, v3"); a(f"v_add_u32 v2, s{sT0}, v2")
                a("s_mov_b32 exec_hi, 15")
                a.vmem(f"global_load_dword v251, v2, s[38:39]", "pfc")
                a("s_mov_b32 exec_hi, -1")
            if s == 6:
                addrcode()
                if c.dualflag:
                    a(f"s_lshl2_add_u32 s{sT0}, s{sC}, s{sWM}"); a(f"s_lshl_b32 s{sT0}, s{sT0}, 7"); a(f"s_add_u32 s{sT0}, s{sT0}, {WS_XI}")
                    a("v_mov_b32 v2, 0")
                    a.vmem(f"buffer_load_dword v254, v2, s[{sWS}:{sWS+3}], s{sT0} offen sc1", "ft")
        assert not loads
        self.stamp(3)
        for r in range(1, 16):
            a(f"v_fmac_f32 v{R_+r}, v{vLam}, v{R_+r-1}"); a(f"v_fmac_f32 v{I_+r}, v{vLam}, v{I_+r-1}")
            a(f"v_fmac_f32 v{R_+r}, v{vNLi}, v{I_+r-1}"); a(f"v_fmac_f32 v{I_+r}, v{vLam+1}, v{R_+r-1}")
        a(f"ds_write2_b32 v9, v{R_+15}, v{I_+15} offset0:0 offset1:1")
        a("s_waitcnt lgkmcnt(0)")
        a("s_barrier")
        EX, G = 128, ACC2
        for s in range(8): a(f"ds_read_b64 {vr(EX+2*s,2)}, v10 offset:{512*s}")
        for s in range(1, 8):
            a(f"s_waitcnt lgkmcnt({7-s})")
            cfma(a, EX + 2 * s, EX + 2 * (s - 1), vL16)
        Lnp = a.newlabel("L_nopub")
        a(f"s_cmp_lg_u32 s{sWM}, 0"); a(f"s_cbranch_scc1 {Lnp}")
        a(f"v_mov_b32 v12, v{EX+14}"); a(f"v_mov_b32 v14, v{EX+15}")
        a("s_mov_b32 exec_hi, 0")
        a.vmem(f"buffer_store_dwordx4 v[12:15], v11, s[{sWS}:{sWS+3}], s59 offen sc1", "pub", optional=True)
        a("s_mov_b32 exec_hi, -1")
        a.label(Lnp)
        self.stamp(4)
        if c.own_touch == "pub":
            a("v_lshlrev_b32 v2, 7, v7")
            a(f"buffer_load_dword v255, v2, s[{sWS}:{sWS+3}], s{sHB} offen{c.touch_fl}")
        a("s_mov_b32 vcc_lo, 0"); a("s_mov_b32 vcc_hi, -1")
        def aggloads():
            Ldn = a.newlabel("L_aggdone")
            if c.samexcd: a(f"buffer_load_dwordx2 v[250:251], v249, s[{sWS}:{sWS+3}], s{sXI} offen sc1")
            for m in range(8):
                a(f"s_cmp_le_u32 s{sC}, {2*m}"); a(f"s_cbranch_scc1 {Ldn}")
                a(f"s_cmp_eq_u32 s{sC}, {2*m+1}"); a("s_cselect_b32 exec_hi, 0, -1")
                a(f"s_sub_u32 s{sT0}, s59, {(2+2*m)*1024}")
                a(f"buffer_load_dwordx4 {vr(G+4*m,4)}, v248, s[{sWS}:{sWS+3}], s{sT0} offen sc1")
            a.label(Ldn)
            a("s_mov_b32 exec_hi, -1")
        def common(a=a):
            for r in range(0, 16, 2):
                a(f"v_pk_mul_f32 v[238:239], {vr(R_+r,2)}, {vr(vCo,2)} op_sel:[0,0] op_sel_hi:[1,0]")
                a(f"v_pk_fma_f32 v[238:239], {vr(I_+r,2)}, {vr(vCo,2)}, v[238:239] op_sel:[0,1,0] op_sel_hi:[1,1,1] neg_lo:[0,1,0] neg_hi:[0,1,0]")
                a(f"v_pk_mul_f32 {vr(I_+r,2)}, {vr(I_+r,2)}, {vr(vCo,2)} op_sel:[0,0] op_sel_hi:[1,0]")
                a(f"v_pk_fma_f32 {vr(I_+r,2)}, {vr(R_+r,2)}, {vr(vCo,2)}, {vr(I_+r,2)} op_sel:[0,1,0] op_sel_hi:[1,1,1]")
                a(f"v_pk_mov_b32 {vr(R_+r,2)}, v[238:239], v[238:239] op_sel:[0,1]")
        fs = c.flag_stride
        cstride = max(128, 16 * fs)
        a(f"v_add_u32 v245, 4096, v10")
        Lp0, Ljoin = a.newlabel("L_poller"), a.newlabel("L_join")
        a(f"s_cmp_eq_u32 s{sWM}, 0"); a(f"s_cbranch_scc1 {Lp0}")
        Ld = a.newlabel("L_pre")
        for wm in range(1, 4):
            Ln = a.newlabel("L_pre")
            if wm < 3: a(f"s_cmp_lg_u32 s{sWM}, {wm}"); a(f"s_cbranch_scc1 {Ln}")
            for k in range(2): a(f"v_cndmask_b32 v{vPre+k}, v{EX+2*(2*wm-1)+k}, v{EX+2*(2*wm)+k}, vcc")
            if wm < 3: a(f"s_branch {Ld}"); a.label(Ln)
        a.label(Ld)
        def cdma(u, q, dw=0, dcol=0):
            t = [f"s_add_u32 m0, s{sWL}, {RING + u * 32768 + q * 1024 - 4096 * dw - 16384 * dcol}"]
            t.append(f"s_add_u32 s{sQ+2}, s{sCQ+q}, s{sCOLB+2*u if dcol else sOWN+u}")
            if dw: t.append(f"s_sub_u32 s{sQ+2}, s{sQ+2}, {32*1152*dw}")
            t.append(f"buffer_load_dwordx4 v{vCo_ if q & 1 else vCe}, s[{sCD}:{sCD+3}], s{sQ+2} offen lds")
            return t
        rec = Rec(); common(rec)
        def mixed(dmas):
            step = max(1, len(rec.l) // (len(dmas) + 1)); k = 0
            for n_, t in enumerate(rec.l):
                if n_ % step == 0 and k < len(dmas) and not t.startswith("s_"):
                    for x in dmas[k]: a(x)
                    k += 1
                a(t)
            for d_ in dmas[k:]:
                for x in d_: a(x)
        own = [cdma(u, q) for u in c.win1 for q in range(4)]
        Lc1 = a.newlabel("L_c1")
        a(f"s_cmp_eq_u32 s{sWM}, 1"); a(f"s_cbranch_scc1 {Lc1}")
        mixed(own)
        a(f"s_branch {Ljoin}")
        a.label(Lc1)
        mixed(own + [cdma(u, q, dw=1) for u in c.win1 for q in range(4)])
        a(f"s_branch {Ljoin}")
        a.label(Lp0)
        for k in range(2): a(f"v_cndmask_b32 v{vPre+k}, 0, v{EX+k}, vcc")
        aggloads()
        common()
        Lp, Lg = a.newlabel("L_aggpoll"), a.newlabel("L_aggok")
        a(f"s_mov_b32 s{sCNT}, {c.spin_max}")
        a.label(Lp)
        a("s_waitcnt vmcnt(0)")
        a(f"v_xor_b32 v2, s{sTAG}, v{G+1}")
        for m in range(8):
            for k in (1, 3):
                if m == 0 and k == 1: continue
                a(f"v_bitop3_b32 v2, v2, v{G+4*m+k}, s{sTAG} bitop3:0xf6")
        if c.samexcd: a(f"v_bitop3_b32 v2, v2, v251, s{sTAG} bitop3:0xf6")
        a("v_cmp_ne_u32 vcc, 0, v2")
        a(f"s_cbranch_vccz {Lg}")
        a(f"s_sub_u32 s{sCNT}, s{sCNT}, 1"); a(f"s_cbranch_scc1 {Lg}")
        aggloads()
        a(f"s_branch {Lp}")
        a.label(Lg)
        for m in range(8):
            acc_ = 12 + 2 * (m & 1); g_ = G + 4 * m; w_ = vr(W_ + 2 * m, 2)
            if m < 2: a(f"v_pk_mul_f32 {vr(acc_,2)}, {vr(g_,2)}, {w_} op_sel:[0,0] op_sel_hi:[0,1]")
            else: a(f"v_pk_fma_f32 {vr(acc_,2)}, {vr(g_,2)}, {w_}, {vr(acc_,2)} op_sel:[0,0,0] op_sel_hi:[0,1,1]")
            a(f"v_pk_fma_f32 {vr(acc_,2)}, {vr(g_+2,2)}, {w_}, {vr(acc_,2)} op_sel:[0,1,0] op_sel_hi:[0,0,1] neg_lo:[0,1,0]")
        a("v_pk_add_f32 v[12:13], v[12:13], v[14:15]")
        a("v_pk_mov_b32 v[14:15], v[12:13], v[12:13] op_sel:[0,1]")
        a("v_permlane32_swap_b32 v12, v14"); a("v_permlane32_swap_b32 v13, v15")
        a("v_pk_add_f32 v[12:13], v[12:13], v[14:15]")
        a("ds_write_b64 v245, v[12:13]")
        if c.samexcd:
            a(f"v_cmp_ne_u32 vcc, s{sXCC}, v250")
            a("s_cmp_lg_u64 vcc, 0"); a("s_cselect_b32 s70, 1, 0"); a("v_mov_b32 v14, s70")
            a(f"v_mov_b32 v2, {EXCH+4096+512}"); a("ds_write_b32 v2, v14")
        a("s_waitcnt lgkmcnt(0)")
        a.label(Ljoin)
        a.vm_reset()
        if c.jstamp: self.stamp(1)
        a("s_barrier")
        self.stamp(5)
        a("ds_read_b64 v[12:13], v245")
        if c.samexcd:
            a(f"v_mov_b32 v2, {EXCH+4096+512}"); a("ds_read_b32 v14, v2")
        a("s_waitcnt lgkmcnt(0)")
        cfma(a, vPre, 12, vL16h)
        if c.samexcd:
            a("v_readfirstlane_b32 s70, v14"); a("s_mov_b32 s71, 0")
        for r in range(0, 16, 2):
            R2, I2, QR, QI, CA = vr(R_+r,2), vr(I_+r,2), vr(Qr+r,2), vr(Qi+r,2), vr(vPre,2)
            a(f"v_pk_fma_f32 {R2}, {QR}, {CA}, {R2} op_sel:[0,0,0] op_sel_hi:[1,0,1]")
            a(f"v_pk_fma_f32 {I2}, {QR}, {CA}, {I2} op_sel:[0,1,0] op_sel_hi:[1,1,1]")
            a(f"v_pk_fma_f32 {R2}, {QI}, {CA}, {R2} op_sel:[0,1,0] op_sel_hi:[1,1,1] neg_lo:[0,1,0] neg_hi:[0,1,0]")
            a(f"v_pk_fma_f32 {I2}, {QI}, {CA}, {I2} op_sel:[0,0,0] op_sel_hi:[1,0,1]")
            a(f"v_cvt_pk_bf16_f32 v{FR+r//2}, v{R_+r}, v{R_+r+1}"); a(f"v_cvt_pk_bf16_f32 v{FR+8+r//2}, -v{I_+r}, -v{I_+r+1}")
            if r in (6, 14):
                ad = vTW if r == 6 else vTW2
                a(f"ds_write_b128 v{ad}, {vr(FR+(r//8)*4,4)}"); a(f"ds_write_b128 v{ad}, {vr(FR+8+(r//8)*4,4)} offset:2048")
        for k in range(4):
            a(f"ds_read_b64_tr_b16 {vr(128+4*k,2)}, v{vTR} offset:{512*k}"); a(f"ds_read_b64_tr_b16 {vr(128+4*k+2,2)}, v{vTR2} offset:{512*k+256}")
        for k in range(4):
            a(f"s_waitcnt lgkmcnt({6-2*k})")
            a(f"buffer_store_dwordx4 {vr(128+4*k,4)}, v4, s[{sWS}:{sWS+3}], s{sHB} offen offset:{1024*k} sc1")
        if c.jstamp: self.stamp(2)
        a("s_barrier")
        HR, NH, CFR, vC = 64, 36, 216, 16
        Lsu = a.newlabel("L_nosetup")
        a(f"s_cmp_lg_u32 s{sWN}, 0"); a(f"s_cbranch_scc1 {Lsu}")
        for k in range(4):
            a(f"ds_read_b64_tr_b16 {vr(144+4*k,2)}, v{vTR} offset:{16384+512*k}"); a(f"ds_read_b64_tr_b16 {vr(144+4*k+2,2)}, v{vTR2} offset:{16384+512*k+256}")
        for p in range(9): a(f"s_lshl_b32 s{sCOLB+p}, s{sCOLB+p}, 6"); a(f"s_add_u32 s{sCOLB+p}, s{sCOLB+p}, s58")
        a("v_lshrrev_b32 v2, 1, v7"); a("v_and_b32 v2, 7, v2"); a("v_lshlrev_b32 v2, 4, v2")
        a("v_lshl_add_u32 v2, v7, 7, v2"); a("v_lshl_add_u32 v2, v6, 13, v2"); a(f"v_add_u32 v2, {2*16384}, v2")
        for e in range(8): a(f"v_xor_b32 v{vC+e}, {16*e}, v2")
        a(f"s_lshl_b32 s{sT0}, s{sC}, 7"); a(f"s_lshl_b32 s{sT1}, s{sWM}, 5"); a(f"s_add_u32 s{sT0}, s{sT0}, s{sT1}"); a(f"s_mul_i32 s{sT0}, s{sT0}, 4608")
        a(f"s_lshl_b32 s{sT1}, s{sJ}, 8"); a(f"s_add_u32 s{sT0}, s{sT0}, s{sT1}"); a(f"s_add_u32 s{sT0}, s{sT0}, 2304")
        a("v_mul_u32_u24 v2, 18432, v6"); a("v_lshl_add_u32 v9, v7, 2, v2")
        if c.dualflag:
            a("v_min_u32 v2, 17, v7"); a("v_lshlrev_b32 v2, 2, v2"); a(f"v_mul_u32_u24 v3, {WS_XI-WS_FLG}, v6"); a("v_add_u32 v2, v2, v3")
        else:
            a("v_min_u32 v2, 17, v1"); a("v_lshlrev_b32 v2, 2, v2")
        a(f"s_mov_b32 s{sCNT}, {c.spin_max}")
        a(f"v_lshlrev_b32 v{vP0+3}, 16, v{vP0+3}"); a(f"v_lshlrev_b32 v{vP0+4}, 16, v{vP0+4}")
        fl = lambda r: a(f"buffer_load_dword v{r}, v2, s[{sWS}:{sWS+3}], s{sFL} offen{c.fl_flags if r == 3 else c.fl_flags2}")
        for dt in range(2):
            for k in range(8):
                d = ACC2 + 16 * dt + 2 * k; x = XR + 8 * dt + k
                a(f"v_lshlrev_b32 v{d}, 16, v{x}"); a(f"v_and_b32 v{d+1}, 0xffff0000, v{x}")
                a(f"v_pk_mul_f32 {vr(d,2)}, {vr(d,2)}, {vr(vP0+2+2*dt,2)} op_sel:[0,{1-dt}] op_sel_hi:[1,{1-dt}]")
                a(f"v_cvt_pk_bf16_f32 v{x}, v{d}, v{d+1}")
                a(f"v_lshlrev_b32 v{d}, 16, v{x}"); a(f"v_and_b32 v{d+1}, 0xffff0000, v{x}")
        a.label(Lsu)
        a("s_waitcnt vmcnt(0) lgkmcnt(0)")
        a("s_mov_b64 exec, 1")
        if c.dualflag:
            a(f"s_add_u32 s{sT1}, s{sFL}, {WS_XI-WS_FLG}")
            a(f"buffer_store_dword v253, v252, s[{sWS}:{sWS+3}], s{sT1} offen")
        a(f"buffer_store_dword v253, v252, s[{sWS}:{sWS+3}], s{sFL} offen sc1")
        a("s_mov_b64 exec, -1")
        a("s_barrier")
        self.stamp(6)
        Lw = a.newlabel("L_w")
        a(f"s_cmp_eq_u32 s{sWN}, 0"); a(f"s_cbranch_scc1 {Lw}")
        if c.w2delay: a(f"s_sleep {c.w2delay}")
        for u, dcols in ((3, (1, 0)), (4, (1,)), (0, (1, 0))):
            if u in c.win1 or u in c.cing1: continue
            for dcol in dcols:
                for q in range(4):
                    for x in cdma(u, q, dcol=dcol): a(x)
        a("s_waitcnt vmcnt(0)")
        a("s_barrier")
        if c.stamps: self.store_stamps(9, sWS)
        a("s_endpgm")
        a.label(Lw)
        HR, NH, CFR, vC = 64, 36, 216, 16
        order = list(range(16, 72)) + list(range(16))
        cbase = [2]
        def cread(n):
            ks = order[n]; cg, e = ks >> 3, ks & 7
            if e == 0 and cg == 6:
                for k in range(8): a(f"v_add_u32 v{vC+k}, 0x10000, v{vC+k}")
                cbase[0] = 6
            if e == 0 and cg == 0:
                for k in range(8): a(f"v_subrev_u32 v{vC+k}, {6*16384}, v{vC+k}")
                cbase[0] = 0
            off = RING + (cg - cbase[0]) * 16384; d = CFR + 8 * (n % 3)
            a(f"ds_read_b128 {vr(d,4)}, v{vC+e} offset:{off}"); a(f"ds_read_b128 {vr(d+4,4)}, v{vC+e} offset:{off+4096}")
        RING_REGS = list(range(160, 208, 4)) + list(range(64, 128, 4))
        def mm(n, h):
            d = CFR + 8 * (n % 3)
            a(f"v_mfma_f32_32x32x16_bf16 {vr(ACC2,16)}, {vr(h,4)}, {vr(d,4)}, {vr(ACC2,16)}")
            a(f"v_mfma_f32_32x32x16_bf16 {vr(ACC2+16,16)}, {vr(h,4)}, {vr(d+4,4)}, {vr(ACC2+16,16)}")
        cread(0); cread(1)
        for n in range(8):
            if n == 5: fl(3)
            cread(n + 2)
            a("s_waitcnt lgkmcnt(4)")
            mm(n, 128 + 4 * n)
        def pollcode(need):
            Lp, Lg = a.newlabel("L_flpoll"), a.newlabel("L_flok")
            a.label(Lp)
            for r0, r1 in ((3, 5), (5, 3)):
                fl(r1)
                a("s_waitcnt vmcnt(1)")
                a(f"v_cmp_eq_u32 s[70:71], s{sTAG}, v{r0}")
                if c.dualflag: a("s_or_b32 s70, s70, s71")
                a(f"s_andn2_b32 s{sT1}, {need}, s70")
                a(f"s_cbranch_scc0 {Lg}")
                if c.fl_sleep: a(f"s_sleep {c.fl_sleep}")
            a(f"s_sub_u32 s{sCNT}, s{sCNT}, 1"); a(f"s_cbranch_scc0 {Lp}")
            a.label(Lg)
        bit = lambda ks: 1 << (ks >> 2)
        first = (c.g2lead + 3) // 4
        pollcode(sum(bit(order[4 * g]) for g in range(first)) if c.g2check else 0x3ffff)
        self.stamp(7)
        a.vm_reset()
        assert not c.samexcd
        slow = []
        def hreg(n): return RING_REGS[(n - 8) % len(RING_REGS)]
        def hload(n):
            ks = order[n]
            if ks % 8 == 4: a(f"s_add_u32 s59, s{sCOLB + (ks >> 3)}, 4096")
            so = sCOLB + (ks >> 3) if ks % 8 < 4 else 59
            a.vmem(f"buffer_load_dwordx4 {vr(hreg(n),4)}, v4, s[{sWS}:{sWS+3}], s{so} offen offset:{1024*(ks%4)}{c.hload_flags}", f"h{n}")
        LEAD = c.g2lead
        for n in range(8, 8 + LEAD): hload(n)
        TL = 0
        def ostore(dt, r):
            row = (r & 3) + 8 * (r >> 2)
            a(f"s_add_u32 s{sT1}, s{sT0}, {row*4608}")
            if not c.skip_b_store: a(f"buffer_store_dword v{ACC2+16*dt+r}, v9, s[{sOS}:{sOS+3}], s{sT1} offen offset:{128*dt}{c.out_flags_b}")
        for n in range(8, 72):
            if n + 2 == max(10, 16 * len(set(c.win1) | set(c.cing1))): a("s_barrier")
            if n + 2 < 72: cread(n + 2)
            a.wait_vm(f"h{n}", extra=f" lgkmcnt({min(4, 2*(71-n))})")
            mm(n, hreg(n))
            if n + LEAD < 72: hload(n + LEAD)
        self.stamp(8)
        for r in range(16):
            if not TL: ostore(0, r)
            ostore(1, r)
        if c.stamps:
            if c.endwait: a("s_waitcnt vmcnt(0)"); self.stamp(1)
            self.store_stamps(9, sWS)
        self.lag(c.lag_b)
        self.span_end(2, [2, 3, 4, 5, 6, 7])
        if c.hold_ns:
            a("s_cmp_lg_u32 s2, 0"); a("s_cbranch_scc1 L_exit")
            a.label("L_hold")
            a("s_memrealtime s[98:99]"); a("s_waitcnt lgkmcnt(0)")
            a("s_sub_u32 s98, s98, s100"); a(f"s_cmp_lt_u32 s98, {c.hold_ns//10}"); a("s_cbranch_scc1 L_hold")
        a("s_endpgm")
        for Ls, Lb, ks in slow:
            a.label(Ls)
            fl(3)
            pollcode(bit(ks))
            a("s_waitcnt vmcnt(0)")
            a(f"s_branch {Lb}")

    def roleA(self):
        a, c = self.a, self.c
        a.vm = [("pf", False)] if c.prefetch else []
        self.inB = False
        PS = 1312
        UB = 0
        UP1, UP2 = 1280, 2624
        ST = 31488
        SW = 16048
        PLO, OLO = (274 * 4, 548 * 4), 4 * 274 * 4
        PHI, OHI, HIOFF, KOFF = PLO, -3 * 274 * 4, 7672 + 3 * 274 * 4, 11888
        def ypl(it, r): return (HIOFF if it >= 2 else 0) + 4 * 136 * (it & 1) + (r & 1) * PLO[0] + (r >> 1) * PLO[1]
        def opl(it, r): return ypl(it, r) + (OHI if it >= 2 else OLO)
        YBASE = [ST + ch * SW for ch in range(4)] + [ST + 4 * SW + k * 2 * SW + 8256 for k in range(2)]
        assert ST + 8 * SW <= LDS_TOTAL
        sD0, sCH, sUS, sOS, sWS = 8, 9, 60, 64, 80
        sT0, sT1, sPASS, sE = 14, 15, 12, 13
        sMID, sLN, sLN2, sODD, sNA, sG = 10, 11, 72, 73, 78, 36
        self.sODD, self.sNA = sODD, sNA
        sKB, sYB, sXW, sXR = 68, 69, 70, 71
        U0 = [224 + 4 * j for j in range(8)]
        P = 20; vDT = 26; vDS = 28
        a.label("L_roleA")
        a("s_sub_u32 s5, s5, s8"); a(f"s_mov_b32 s{sODD}, s9")
        a(f"s_mul_i32 s{sNA}, s9, 3"); a(f"s_add_u32 s{sNA}, s{sNA}, 12"); a(f"s_cmp_ge_u32 s5, s{sNA}"); a("s_cbranch_scc1 L_exit")
        a(f"s_mov_b32 s{sT0}, s5"); a(f"s_lshl_b32 s{sE}, s{sT0}, 3"); a(f"s_add_u32 s{sE}, s{sE}, s3")
        a(f"s_lshr_b32 s{sT1}, s4, 1"); a(f"s_mul_i32 s{sT1}, s{sT1}, 27"); a("s_mul_i32 s59, s9, 12"); a(f"s_add_u32 s{sT1}, s{sT1}, s59")
        a(f"s_mul_i32 s59, s{sT1}, 43"); a("s_lshr_b32 s59, s59, 9"); a(f"s_mov_b32 s{sLN}, s59")
        a(f"s_add_u32 s59, s{sT1}, s{sNA}"); a("s_sub_u32 s59, s59, 1"); a("s_mul_i32 s59, s59, 43"); a(f"s_lshr_b32 s{sLN2}, s59, 9")
        a(f"s_add_u32 s{sT0}, s{sT0}, s{sT1}")
        a(f"s_mov_b32 s{sG}, s{sT0}")
        a(f"s_mul_i32 s{sT1}, s{sT0}, 171"); a(f"s_lshr_b32 s{sT1}, s{sT1}, 9"); a(f"s_mul_i32 s59, s{sT1}, 3"); a(f"s_sub_u32 s{sMID}, s{sT0}, s59")
        a(f"s_lshl_b32 s{sD0}, s{sT1}, 4"); a(f"s_mul_i32 s{sT0}, s{sMID}, 6"); a(f"s_min_u32 s{sT0}, s{sT0}, 10"); a(f"s_add_u32 s{sD0}, s{sD0}, s{sT0}")
        a(f"s_lshr_b32 s{sT0}, s3, 1"); a(f"s_add_u32 s{sT0}, s{sT0}, 2"); a("s_cmp_lt_u32 s3, 4"); a(f"s_cselect_b32 s{sCH}, s3, s{sT0}")
        a(f"s_cselect_b32 s{sPASS}, 2, 1")
        a(f"s_add_u32 s{sT0}, s{sD0}, s{sCH}")
        a(f"s_lshl_b32 s{sT1}, s{sT0}, 8"); a(f"v_lshl_add_u32 v2, v1, 2, s{sT1}")
        a(f"s_lshl_b32 s{sT1}, s{sT0}, 1"); a(f"v_mov_b32 v3, s{sT1}")
        a(f"s_lshl_b32 s{sT1}, s{sD0}, 1"); a(f"v_mov_b32 v35, s{sT1}")
        a("s_waitcnt lgkmcnt(0)")
        for k, p in enumerate((pAre, pAim, pABre, pABim, pACre, pACim)):
            a.vmem(f"global_load_dword v{P+k}, v2, {sp(p)}", "par")
        a.vmem(f"global_load_ushort v{vDT}, v3, {sp(pAdt)}", "par")
        a.vmem(f"global_load_dwordx3 {vr(vDS,3)}, v35, {sp(pAD)}", "par")
        srd(a, sUS, pAu, XSZ); srd(a, sOS, pOut, OUTSZ); srd(a, sWS, pWs, WS_SIZE)
        def pf_u():
            a("v_mul_u32_u24 v2, 1152, v1")
            a(f"s_and_b32 s{sT0}, s{sE}, 31"); a(f"s_mul_i32 s{sT0}, s{sT0}, {64*1152}")
            a(f"s_lshr_b32 s{sT1}, s{sE}, 5"); a(f"s_add_u32 s{sT1}, s{sT1}, s{sLN}"); a(f"s_cmp_gt_u32 s{sT1}, s{sLN2}"); a(f"s_cselect_b32 s{sT0}, {XSZ}, s{sT0}")
            a(f"s_lshl_b32 s{sT1}, s{sT1}, 7"); a(f"s_add_u32 s{sT0}, s{sT0}, s{sT1}")
            a.vmem(f"buffer_load_dword v250, v2, s[{sUS}:{sUS+3}], s{sT0} offen", "pf3")
        def pf_c():
            Lc_ = a.newlabel("L_nopfc")
            a(f"s_cmp_ge_u32 s{sE}, 81"); a(f"s_cbranch_scc1 {Lc_}")
            a("v_lshlrev_b32 v2, 7, v1"); a(f"s_lshl_b32 s{sT0}, s{sE}, 13"); a(f"v_add_u32 v2, s{sT0}, v2")
            a.vmem(f"global_load_dword v249, v2, {sp(pCre)}", "pf3", optional=True)
            a.vmem(f"global_load_dword v248, v2, {sp(pCim)}", "pf3", optional=True)
            a.label(Lc_)
            if c.pretouch:
                Lt_ = a.newlabel("L_nopt")
                a(f"s_cmp_ge_u32 s{sE}, 72"); a(f"s_cbranch_scc1 {Lt_}")
                a("v_lshlrev_b32 v2, 7, v1"); a(f"s_lshl_b32 s{sT0}, s{sE}, 13"); a(f"s_mul_i32 s{sT1}, s4, {8*72*1024}"); a(f"s_add_u32 s{sT0}, s{sT0}, s{sT1}"); a(f"s_add_u32 s{sT0}, s{sT0}, {WS_H}")
                a.vmem(f"buffer_load_dword v247, v2, s[{sWS}:{sWS+3}], s{sT0} offen", "pf3", optional=True)
                a.label(Lt_)
        def pf_m():
            Lm = a.newlabel("L_nopfm")
            a(f"s_cmp_lg_u32 s{sMID}, 1"); a(f"s_cbranch_scc1 {Lm}")
            ns = 9 - c.m_s0
            for k in range((22 * ns + 31) // 32):
                def idx(t0, k=k):
                    a(f"s_sub_u32 s{t0}, s5, 18"); a(f"s_mul_i32 s{t0}, s{t0}, 171"); a(f"s_lshr_b32 s{t0}, s{t0}, 9"); a(f"s_min_u32 s{t0}, s{t0}, 3")
                    a(f"s_lshl2_add_u32 s{t0}, s3, s{t0}"); a(f"s_add_u32 s{t0}, s{t0}, {32*k}")
                self.pf_s(c.m_s0, ns, sT0, sT1, 2, 240 + k, idx=idx, optional=True)
            a.label(Lm)
        def pf_c2(k):
            a(f"s_lshl2_add_u32 s{sT0}, s5, s3")
            if k: a(f"s_lshl2_add_u32 s{sT0}, s{sNA}, s{sT0}")
            a(f"s_cmp_eq_u32 s{sODD}, 0"); a("s_movk_i32 s59, 6554"); a("s_cselect_b32 s59, s59, 0x2000"); a("s_cselect_b32 s79, 10, 8")
            a(f"s_mul_i32 s{sT1}, s{sT0}, s59"); a(f"s_lshr_b32 s{sT1}, s{sT1}, 16")
            a(f"s_mul_i32 s59, s{sT1}, s79"); a(f"s_sub_u32 s{sT0}, s{sT0}, s59")
            a(f"s_min_u32 s{sT1}, s{sT1}, 8"); a(f"s_add_u32 s{sT1}, s{sT1}, 2"); a(f"s_sub_u32 s59, s{sT1}, 9"); a(f"s_min_u32 s{sT1}, s{sT1}, s59"); a(f"s_lshl_b32 s{sT1}, s{sT1}, 7")
            a(f"s_bitcmp1_b32 s{sT0}, 0"); a(f"s_cselect_b32 s6, s{pCim}, s{pCre}"); a(f"s_cselect_b32 s7, s{pCim+1}, s{pCre+1}")
            a(f"s_lshr_b32 s{sT0}, s{sT0}, 1"); a(f"s_mul_i32 s59, s{sODD}, 5"); a(f"s_add_u32 s{sT0}, s{sT0}, s59")
            a(f"s_mul_i32 s{sT0}, s{sT0}, {64*1152}"); a(f"s_add_u32 s{sT0}, s{sT0}, s{sT1}")
            a("v_mul_u32_u24 v2, 1152, v1"); a(f"v_add_u32 v2, s{sT0}, v2")
            a(f"global_load_dword v{4+k}, v2, s[6:7]")
        def touch_small():
            a(f"s_lshl_b32 s{sT0}, s{sG}, 13"); a(f"s_add_u32 s{sT0}, s{sT0}, {WS_AGG}")
            a(f"s_cmp_eq_u32 s{sG}, 18"); a(f"s_cselect_b32 s{sT0}, {WS_FLG}, s{sT0}")
            a(f"s_cmp_gt_u32 s{sG}, 18"); a(f"s_cselect_b32 s{sT0}, {WS_SIZE}, s{sT0}")
            a("s_cmp_lg_u32 s3, 7"); a(f"s_cselect_b32 s{sT0}, {WS_SIZE}, s{sT0}")
            a("v_lshlrev_b32 v2, 7, v1")
            a.vmem(f"buffer_load_dword v243, v2, s[{sWS}:{sWS+3}], s{sT0} offen", "pf3")
        def touch_h(vd, w0=4):
            a(f"s_lshl2_add_u32 s{sT0}, s{sG}, s3"); a(f"s_sub_u32 s{sT0}, s{sT0}, {w0}"); a(f"s_lshl_b32 s{sT0}, s{sT0}, 13"); a(f"s_add_u32 s{sT0}, s{sT0}, {WS_H}")
            a("v_lshlrev_b32 v2, 7, v1")
            a(f"buffer_load_dword v{vd}, v2, s[{sWS}:{sWS+3}], s{sT0} offen{c.touch_fl}")
            a(f"s_add_u32 s{sT0}, s{sT0}, {432*8192}"); a(f"s_cmp_ge_u32 s{sT0}, {WS_H+576*8192}"); a(f"s_cselect_b32 s{sT0}, {WS_SIZE}, s{sT0}")
            a(f"buffer_load_dword v{vd+1}, v2, s[{sWS}:{sWS+3}], s{sT0} offen{c.touch_fl}")
        def touch_m():
            Lm = a.newlabel("L_notm")
            a(f"s_cmp_lg_u32 s{sMID}, 1"); a(f"s_cbranch_scc1 {Lm}")
            a(f"s_mul_i32 s{sT0}, s5, 171"); a(f"s_lshr_b32 s{sT0}, s{sT0}, 9"); a(f"s_lshl3_add_u32 s{sT0}, s{sT0}, s3")
            a("v_lshlrev_b32 v2, 7, v1")
            for r in range(3):
                if r: a(f"s_lshl3_add_u32 s{sT0}, s{sODD}, s{sT0}"); a(f"s_add_u32 s{sT0}, s{sT0}, 32")
                a(f"s_and_b32 s{sT1}, s{sT0}, 15"); a("s_and_b32 s59, s4, 6"); a(f"s_lshl3_add_u32 s{sT1}, s59, s{sT1}"); a(f"s_mul_i32 s{sT1}, s{sT1}, {72*1024}")
                a(f"s_lshr_b32 s59, s{sT0}, 4"); a(f"s_add_u32 s79, s59, s{sODD}"); a(f"s_cmp_ge_u32 s79, 5"); a(f"s_cselect_b32 s{sT1}, {WS_SIZE}, s{sT1}")
                a(f"s_mul_i32 s79, s{sODD}, 5"); a("s_add_u32 s59, s59, s79"); a("s_lshl_b32 s59, s59, 13"); a(f"s_add_u32 s{sT1}, s{sT1}, s59"); a(f"s_add_u32 s{sT1}, s{sT1}, {WS_H}")
                a.vmem(f"buffer_load_dword v{240+r}, v2, s[{sWS}:{sWS+3}], s{sT1} offen{c.touch_fl}", "pf3", optional=True)
            a.label(Lm)
        if c.touch_small: touch_small()
        PFS = {"u": pf_u, "m": pf_m, "h": touch_m, "b": lambda: self.pf_b(sE, sT0, sT1, 2, 251), "c": pf_c,
               "s": lambda: self.pf_s(2, 3, sT0, sT1, 2, 251), "t": lambda: self.pf_s(5, 4, sT0, sT1, 2, 244)}
        if c.tlbwarm:
            a("v_lshlrev_b32 v2, 20, v1")
            a.vmem(f"buffer_load_dword v246, v2, s[{sWS}:{sWS+3}], 0 offen", "pf3")
            a.vmem(f"buffer_load_dword v245, v2, s[{sOS}:{sOS+3}], 0 offen", "pf3")
        for what in c.pf_early:
            PFS[what]()
        self.stamp(1)
        if c.a_exit: a("s_endpgm")
        a("v_and_b32 v31, 255, v0"); a("v_lshrrev_b32 v31, 2, v31"); a("v_and_b32 v32, 3, v0"); a("v_lshl_add_u32 v33, v31, 5, v32")
        a("v_mul_u32_u24 v34, 1152, v33"); a("v_add_u32 v34, v35, v34")
        a("v_lshrrev_b32 v36, 6, v0"); a(f"v_mul_u32_u24 v36, {4*PS}, v36"); a("v_and_b32 v37, 15, v0"); a("v_lshl_add_u32 v36, v37, 4, v36")
        a("v_bfe_u32 v37, v0, 4, 1"); a(f"v_mul_u32_u24 v37, {UP1}, v37"); a("v_add_u32 v36, v36, v37")
        a("v_bfe_u32 v37, v0, 5, 1"); a(f"v_mul_u32_u24 v37, {UP2}, v37"); a("v_add_u32 v36, v36, v37")
        for k in range(4): a(f"v_mov_b32 v{40+k}, 0")
        Lz = a.newlabel("L_noz")
        a("s_cmp_ge_u32 s3, 6"); a(f"s_cbranch_scc1 {Lz}")
        a(f"ds_write_b128 v36, v[40:43] offset:{UB}")
        a.label(Lz)
        a(f"s_mul_i32 s{sT0}, s3, {SW}"); a(f"s_add_u32 s58, s{sT0}, {ST}")
        a(f"s_add_u32 s{sKB}, s58, {KOFF}"); a(f"s_mov_b32 s{sYB}, s58")
        a(f"s_add_u32 s{sXW}, s58, 4160"); a(f"s_add_u32 s{sXR}, s58, 23680")
        Lb = a.newlabel("L_bases")
        a("s_cmp_lt_u32 s3, 4"); a(f"s_cbranch_scc1 {Lb}")
        a(f"s_add_u32 s{sYB}, s58, 8256"); a(f"s_mov_b32 s{sKB}, s58")
        a("s_bitcmp0_b32 s3, 0"); a(f"s_cbranch_scc1 {Lb}")
        a(f"s_add_u32 s{sKB}, s58, {27936-SW}"); a(f"s_sub_u32 s{sYB}, s58, {SW-8256}")
        a(f"s_add_u32 s{sXW}, s58, {23680-SW}"); a(f"s_sub_u32 s{sXR}, s58, {SW-4160}")
        a.label(Lb)
        a("v_lshlrev_b32 v36, 2, v1"); a("v_add_u32 v36, s58, v36")
        a("v_and_b32 v7, 31, v1"); a("v_lshrrev_b32 v3, 5, v1")
        a("v_mul_u32_u24 v37, 272, v7"); a("v_lshl_add_u32 v37, v3, 4, v37"); a("v_add_u32 v37, s58, v37")
        a(f"s_lshl_b32 s{sT0}, s3, 2"); a(f"s_add_u32 s{sT0}, s{sT0}, {ST+8*SW}"); a(f"v_mov_b32 v2, s{sT0}"); a("ds_write_b32 v2, v40")
        F = 64
        for k in range(16): a(f"v_mov_b32 v{F+k}, 0")
        a.wait_vm("par")
        self.stamp(2)
        if c.touch_h == "par":
            Lth = a.newlabel("L_noth")
            a("s_cmp_ge_u32 s3, 4"); a(f"s_cbranch_scc1 {Lth}")
            touch_h(4, 0)
            a.label(Lth)
        for what in c.pf_late:
            PFS[what]()
        a(f"v_lshlrev_b32 v{vDT}, 16, v{vDT}"); a(f"v_mul_f32 v{vDT}, {LOG2E}, v{vDT}"); a(f"v_exp_f32 v{vDT}, v{vDT}")
        a(f"v_cvt_pk_bf16_f32 v{vDT}, v{vDT}, v{vDT}"); a(f"v_lshlrev_b32 v{vDT}, 16, v{vDT}")
        Lh = a.newlabel("L_lo")
        a("s_cmp_lt_u32 s3, 4"); a(f"s_cbranch_scc1 {Lh}")
        a("s_bitcmp0_b32 s3, 0"); a(f"s_cbranch_scc1 {Lh}")
        for k in range(6): a(f"v_lshrrev_b32 v{P+k}, 16, v{P+k}")
        a.label(Lh)
        if c.mid_skip:
            Lms = a.newlabel("L_dopass")
            a("s_cmp_lt_u32 s3, 4"); a(f"s_cbranch_scc1 {Lms}")
            a(f"s_cmp_lg_u32 s{sMID}, 1"); a(f"s_cbranch_scc1 {Lms}")
            for j in range(8):
                a(f"s_mov_b32 s{sT1}, {4608*j}")
                a(f"buffer_load_dwordx3 {vr(U0[j],3)}, v34, s[{sUS}:{sUS+3}], s{sT1} offen")
            a("s_branch L_passdone")
            a.label(Lms)
        E1, E8, E256, V = 40, 42, 44, 96
        T = 46
        a.label("L_pass")
        for k in range(6): a(f"v_lshlrev_b32 v{T+k}, 16, v{P+k}")
        for k in range(6): a(f"v_lshrrev_b32 v{P+k}, 16, v{P+k}")
        a(f"v_mul_f32 v{T}, v{vDT}, v{T}"); a(f"v_mul_f32 v{T+1}, v{vDT}, v{T+1}")
        a(f"v_mul_f32 v{T}, {LOG2E}, v{T}"); a(f"v_mul_f32 v{T+1}, {INV2PI}, v{T+1}")
        cexp(a, E8, T, T + 1, f2u(8.0), T + 8, T + 9)
        cexp(a, E1, T, T + 1, None, T + 6, T + 7)
        cexp(a, E256, T, T + 1, f2u(256.0), T + 8, T + 9)
        cmul(a, T + 6, T + 4, T + 2)
        a(f"v_mul_f32 v{V}, v{vDT}, v{T+6}"); a(f"v_mul_f32 v{V+1}, v{vDT}, v{T+7}")
        rows = {}
        h0 = [0,1,2,3,4,5,6,7, 256,258,260,262,264, 1024,1032]
        h1 = [512,516,520, 768,772,776, 1280,1288, 1536,1544, 1792,1800]
        for r, o in enumerate(h0): rows[o] = (r & 3) + 8 * (r >> 2)
        for r, o in enumerate(h1): rows[o] = (r & 3) + 8 * (r >> 2) + 4
        assert sorted(rows.values()) == list(range(27))
        plan = [(j, j - 1, E1) for j in range(1, 9)]
        for q in range(1, 8): plan.append((256 * q, 256 * (q - 1), E256))
        for q in range(1, 8): plan.append((256 * q + 8, 256 * (q - 1) + 8, E256))
        plan += [(258, 2, E256), (260, 4, E256), (262, 6, E256), (516, 260, E256), (772, 516, E256)]
        reg = {0: V}
        for n_, (o, s_, m_) in enumerate(plan): reg[o] = V + 2 + 2 * n_
        tmpc = [60, 61, 62, 63]
        cnt = [0]
        def xrow(o):
            a(f"v_cvt_pk_bf16_f32 v{tmpc[cnt[0]%4]}, v{reg[o]}, -v{reg[o]+1}")
            a(f"ds_write_b32 v36, v{tmpc[cnt[0]%4]} offset:{272*rows[o]}"); cnt[0] += 1
        def doX(n_):
            o, s_, m_ = plan[n_]
            cmul(a, reg[o], reg[s_], m_)
            if o in rows: xrow(o)
        YA, YBr = 56, 58
        def yrow(col, r_):
            a(f"v_cvt_pk_bf16_f32 v{tmpc[cnt[0]%4]}, v{r_}, v{r_+1}")
            a(f"ds_write_b32 v36, v{tmpc[cnt[0]%4]} offset:{272*(27+col)}"); cnt[0] += 1
        xrow(0)
        a(f"v_mov_b32 v{tmpc[cnt[0]%4]}, 0x3f80"); a(f"ds_write_b32 v36, v{tmpc[cnt[0]%4]} offset:{272*27}"); cnt[0] += 1
        yrow(1, E8)
        cur = E8; nxt = YA
        gpts = c.gather_pts
        for col in range(2, 32):
            cmul(a, nxt, cur, E8); yrow(col, nxt)
            cur = nxt; nxt = YBr if nxt == YA else YA
            if col - 2 < len(plan): doX(col - 2)
            if col in gpts:
                Lg_ = a.newlabel("L_nog")
                a("s_cmp_lt_u32 s3, 4"); a(f"s_cbranch_scc1 {Lg_}")
                k0 = gpts.index(col); n = 8 // len(gpts)
                for j in range(n * k0, n * k0 + n):
                    a(f"s_mov_b32 s{sT1}, {4608*j}")
                    a.vmem(f"buffer_load_dwordx3 {vr(U0[j],3)}, v34, s[{sUS}:{sUS+3}], s{sT1} offen", "u")
                a.label(Lg_)
        FA = 160
        for ks in range(8):
            a(f"ds_read_b128 {vr(FA+8*ks,4)}, v37 offset:{32*ks}")
            a(f"ds_read_b128 {vr(FA+8*ks+4,4)}, v37 offset:{27*272+32*ks}")
        for ks in range(8):
            a(f"s_waitcnt lgkmcnt({14-2*ks})")
            a(f"v_mfma_f32_32x32x16_bf16 {vr(F,16)}, {vr(FA+8*ks,4)}, {vr(FA+8*ks+4,4)}, {vr(F,16)}")
        if c.touch_h == "p1":
            Lth = a.newlabel("L_noth")
            a("s_cmp_ge_u32 s3, 4"); a(f"s_cbranch_scc1 {Lth}")
            a(f"s_cmp_lg_u32 s{sPASS}, 2"); a(f"s_cbranch_scc1 {Lth}")
            touch_h(4, 0)
            a.label(Lth)
        if "c" in c.pf_mid:
            Lc2 = a.newlabel("L_noc2")
            a("s_cmp_ge_u32 s3, 4"); a(f"s_cbranch_scc1 {Lc2}")
            a(f"s_cmp_lg_u32 s{sPASS}, {3 - c.pf_c_pass}"); a(f"s_cbranch_scc1 {Lc2}")
            pf_c2(0); pf_c2(1)
            a.label(Lc2)
        a(f"s_sub_u32 s{sPASS}, s{sPASS}, 1"); a(f"s_cmp_lg_u32 s{sPASS}, 0"); a("s_cbranch_scc1 L_pass")
        a.label("L_passdone")
        self.stamp(3)
        ACC, BF = 128, 96
        def acc(pp, it): return ACC + 32 * it + 16 * pp
        a("v_lshrrev_b32 v2, 5, v1"); a("v_lshlrev_b32 v2, 6, v2")
        a("v_bfe_u32 v3, v1, 2, 2"); a("v_lshl_add_u32 v2, v3, 3, v2")
        a("v_and_b32 v3, 3, v1"); a("v_lshlrev_b32 v3, 3, v3"); a("v_sub_u32 v2, v3, v2")
        a("v_bfe_u32 v3, v1, 4, 1"); a("v_lshl_add_u32 v2, v3, 5, v2")
        a(f"s_add_u32 s{sT0}, s{sKB}, 88"); a(f"v_add_u32 v40, s{sT0}, v2")
        a(f"v_mul_u32_u24 v41, {UP1}, v3"); a("v_and_b32 v2, 15, v1"); a("v_lshrrev_b32 v44, 5, v1"); a("v_add_u32 v42, v2, v44"); a("v_lshl_add_u32 v41, v42, 4, v41")
        a(f"s_mul_i32 s{sT0}, s{sCH}, {4*PS}"); a(f"s_add_u32 s{sT0}, s{sT0}, {UB}"); a(f"v_add_u32 v41, s{sT0}, v41")
        a("v_lshrrev_b32 v42, 2, v2"); a("v_lshlrev_b32 v42, 1, v42"); a("v_lshl_add_u32 v42, v2, 3, v42"); a("v_lshl_add_u32 v42, v3, 2, v42"); a("v_add_u32 v42, v42, v44"); a("v_lshlrev_b32 v42, 2, v42")
        a(f"v_add_u32 v42, s{sYB}, v42")
        a("v_and_b32 v43, 51, v1"); a("v_cmp_eq_u32 vcc, 51, v43"); a("v_mov_b32 v43, 4"); a("v_mov_b32 v44, 12")
        a("v_cndmask_b32 v43, v43, v44, vcc"); a("v_add_u32 v43, v43, v42")
        a("v_cmp_eq_u32 vcc, 63, v1"); a(f"v_mov_b32 v37, {HIOFF+OHI-OLO-4*272}"); a("v_cndmask_b32 v37, 0, v37, vcc"); a("v_add_u32 v37, v37, v43")
        a("v_lshlrev_b32 v39, 4, v1")
        Lf1 = a.newlabel("L_f1")
        a("s_cmp_lt_u32 s3, 4"); a(f"s_cbranch_scc1 {Lf1}")
        a(f"v_add_u32 v2, s{sXW}, v39")
        for k in range(4): a(f"ds_write_b128 v2, {vr(F+4*k,4)} offset:{1024*k}")
        a("s_mov_b32 s6, 0x05040100"); a("s_mov_b32 s7, 0x07060302")
        a("v_and_b32 v38, 1, v32"); a(f"v_mul_u32_u24 v38, {UP1}, v38"); a("v_lshl_add_u32 v38, v31, 4, v38")
        a("v_lshrrev_b32 v3, 1, v32"); a(f"v_mul_u32_u24 v3, {UP2}, v3"); a("v_add_u32 v38, v38, v3")
        a("s_waitcnt vmcnt(0)")
        if c.touch_h == "U": touch_h(4)
        for ch in range(6):
            sel = "s7" if ch & 1 else "s6"; m = ch >> 1; t = 96 + 4 * ch
            for k in range(4): a(f"v_perm_b32 v{t+k}, v{U0[2*k+1]+m}, v{U0[2*k]+m}, {sel}")
            a(f"ds_write_b128 v38, {vr(t,4)} offset:{UB+ch*4*PS+256}")
        a("s_waitcnt lgkmcnt(0)")
        a("s_barrier")
        if c.a_prio: a("s_setprio 1")
        if c.touch_h == "B1": touch_h(4)
        a(f"v_add_u32 v2, s{sXR}, v39")
        for k in range(4): a(f"ds_read_b128 {vr(96+4*k,4)}, v2 offset:{1024*k}")
        a("s_waitcnt lgkmcnt(0)")
        for k in range(15): a(f"v_add_f32 v{F+k}, v{F+k}, v{96+k}")
        a.label(Lf1)
        a(f"s_add_u32 s{sT0}, s{sKB}, 64")
        a(f"v_lshl_add_u32 v2, v7, 4, s{sT0}")
        a("v_and_b32 v3, 1, v1"); a("v_cmp_eq_u32 vcc, 1, v3")
        def blk(b, quad, tb):
            for k, (x, y) in enumerate(quad): a(f"v_cvt_pk_bf16_f32 v{tb+k}, v{x}, v{y}")
            a(f"ds_write_b128 v2, {vr(tb,4)} offset:{512*b}")
        def blk3(b, f0, f8, tb):
            a(f"v_cndmask_b32 v{tb+4}, v{f0}, v{f8}, vcc")
            blk(b, [(f0, f0), (f0, f0), (tb + 4, f8), (f8, f8)], tb)
        a("s_mov_b32 exec_hi, 0")
        blk(0, [(F, F+1), (F+2, F+3), (F+4, F+5), (F+6, F+7)], 96)
        blk(1, [(F+8, F+8), (F+9, F+10), (F+10, F+10), (F+11, F+12)], 104)
        blk3(4, F + 13, F + 14, 112)
        a("s_mov_b32 exec_hi, -1"); a("s_mov_b32 exec_lo, 0")
        blk(2, [(F, F), (F, F+1), (F+1, F+1), (F+2, F+2)], 96)
        blk(3, [(F+3, F+3), (F+3, F+4), (F+4, F+4), (F+5, F+5)], 104)
        blk3(5, F + 6, F + 7, 112); blk3(6, F + 8, F + 9, 120); blk3(7, F + 10, F + 11, 128)
        a("s_mov_b32 exec_hi, 15")
        for k in range(4): a(f"v_mov_b32 v{136+k}, 0")
        a("v_subrev_u32 v2, 64, v2")
        a("ds_write_b128 v2, v[136:139]")
        a("s_mov_b32 exec_hi, 1"); a(f"v_mov_b32 v2, s{sYB}")
        for r in range(3): a(f"ds_write_b32 v2, v136 offset:{opl(0,r)}")
        a("s_mov_b64 exec, -1")

        def conv(its, fill=None, after=None):
            fill = list(fill or [])
            nm = sum(16 * (it + 1) for it in its)
            rate = (len(fill) + 0.0) / max(1, int(nm * c.fill_frac)); credit = [0.0 - c.fill_skip * rate]
            def filler():
                credit[0] += rate
                while fill and credit[0] >= 1.0:
                    t = fill.pop(0); credit[0] -= 1.0
                    a(t)
                    if t.startswith("ds_"): lg.append(("w",))
                    if not fill and after: after(lg)
            AFB = [48, 64]
            qs = sorted({q for it in its for q in range(it + 1)})
            ms = sorted({it - q for it in its for q in range(it + 1)})
            seq = [(rho, pp, m) for rho in range(8) for pp in range(2) for m in ms]
            lg = []
            def bread(n_):
                rho, pp, m = seq[n_]
                if c.cv_nob: return
                a(f"ds_read_b128 {vr(BF+4*(n_%8),4)}, v41 offset:{pp*UP2+256+256*m-32*rho-16}"); lg.append(("b", n_))
            def aread(rho, q):
                if c.cv_noa: return
                for k in range(2):
                    a(f"ds_read_b64_tr_b16 {vr(AFB[rho&1]+4*q+2*k,2)}, v40 offset:{2*(64+64*(rho+8*q)-16*k)-88}"); lg.append(("a", rho, q))
            def waitfor(key):
                if key in lg:
                    idx = max(i for i, k_ in enumerate(lg) if k_ == key)
                    a(f"s_waitcnt lgkmcnt({min(len(lg) - 1 - idx, 15)})")
                    del lg[:idx + 1]
            PF = c.a_pf
            aread(0, qs[0]); bread(0)
            for q in qs[1:]: aread(0, q)
            for n_ in range(1, PF): bread(n_)
            used = set()
            per = len(ms) * 2
            for n_, (rho, pp, m) in enumerate(seq):
                if n_ + PF < len(seq): bread(n_ + PF)
                k_ = n_ - rho * per - 1
                if rho < 7 and 0 <= k_ < len(qs): aread(rho + 1, qs[k_])
                waitfor(("b", n_))
                for it in its:
                    q = it - m
                    if q < 0: continue
                    waitfor(("a", rho, q))
                    d = acc(pp, it); af = AFB[rho & 1] + 4 * q
                    if not c.cv_nomfma: a(f"v_mfma_f32_32x32x16_bf16 {vr(d,16)}, {vr(af,4)}, {vr(BF+4*(n_%8),4)}, {vr(d,16) if d in used else '0'}")
                    used.add(d)
                    filler()
            while fill: credit[0] += 1.0; filler()
        def combine(its, a=a):
            for it in its:
                Pq, Qq = acc(0, it), acc(1, it)
                for bb in range(2):
                    for base in (Pq, Qq):
                        for r in range(4): a(f"v_permlane16_swap_b32 v{base+4*bb+r}, v{base+8+4*bb+r}")
                    A0, A1, A2, A3 = Pq + 4 * bb, Pq + 8 + 4 * bb, Qq + 4 * bb, Qq + 8 + 4 * bb
                    a(f"v_add_f32 v{A0+2}, v{A0+2}, v{A2}"); a(f"v_add_f32 v{A0+3}, v{A0+3}, v{A2+1}")
                    a(f"v_add_f32 v{A0+1}, v{A0+1}, v{A1}")
                    a(f"v_add_f32 v{A1+3}, v{A1+3}, v{A2+2}"); a(f"v_add_f32 v{A2+3}, v{A2+3}, v{A3+2}")
                    a(f"v_add_f32 v{A0+2}, v{A0+2}, v{A1+1}"); a(f"v_add_f32 v{A0+3}, v{A0+3}, v{A1+2}")
                    a(f"v_add_f32 v{A1+3}, v{A1+3}, v{A3+1}"); a(f"v_add_f32 v{A0+3}, v{A0+3}, v{A3}")
                    o = 8 * bb
                    for r in range(4): a(f"ds_write_b32 v42, v{A0+r} offset:{ypl(it,r)+o}")
                    for r, src in enumerate((A1 + 3, A2 + 3, A3 + 3)):
                        if bb == 0: a(f"ds_write_b32 v42, v{src} offset:{opl(it,r)+o+4}")
                        else: a(f"ds_write_b32 v{37 if it == 1 else 43}, v{src} offset:{opl(it,r)+o}")
        def epilogue(R, row0, vtid):
            I0 = row0 // 4
            a(f"v_lshrrev_b32 v2, 2, v{vtid}"); a(f"v_and_b32 v3, 3, v{vtid}")
            if R > 1: a(f"v_lshlrev_b32 v2, {R.bit_length()-1}, v2")
            a("v_lshl_add_u32 v4, v2, 2, v3"); a("v_mul_u32_u24 v4, 4608, v4")
            a("v_and_b32 v6, 1, v3"); a("v_lshrrev_b32 v9, 1, v3")
            a(f"v_mul_u32_u24 v5, {UP1}, v6"); a("v_lshl_add_u32 v5, v2, 1, v5"); a(f"v_mul_u32_u24 v8, {UP2}, v9"); a("v_add_u32 v5, v5, v8")
            a("v_lshrrev_b32 v8, 5, v2"); a("v_lshl_add_u32 v2, v8, 1, v2"); a("v_lshlrev_b32 v2, 2, v2")
            hi = row0 >= 1024
            pl, ob = (PHI, OHI) if hi else (PLO, OLO)
            a(f"v_mul_u32_u24 v8, {pl[0]}, v6"); a("v_add_u32 v2, v2, v8")
            a(f"v_mul_u32_u24 v8, {pl[1]}, v9"); a("v_add_u32 v2, v2, v8")
            yo = HIOFF if hi else 4 * (I0 + 2 * (I0 >> 5))
            a(f"v_add_u32 v2, {ST+yo}, v2"); a(f"v_add_u32 v8, {ob & 0xffffffff}, v2")
            a("v_cmp_eq_u32 vcc, 3, v3"); a("v_cndmask_b32 v8, v8, v2, vcc")
            a("v_cndmask_b32 v9, 1.0, 0, vcc")
            a(f"v_add_u32 v10, {YBASE[4]-ST}, v2"); a(f"v_add_u32 v11, {YBASE[4]-ST}, v8")
            a("v_mov_b32 v12, v4"); a("v_mul_u32_u24 v14, 4596, v6"); a("v_sub_u32 v4, v4, v14")
            a("s_mov_b32 s74, 0x55555555"); a("s_mov_b32 s75, 0x55555555"); a("s_mov_b32 s76, 0xaaaaaaaa"); a("s_mov_b32 s77, 0xaaaaaaaa")
            a(f"s_lshl_b32 s{sT0}, s{sD0}, 2"); a(f"s_add_u32 s{sT0}, s{sT0}, {row0*4608}")
            Y, O, U, S = 64, 96, 128, 144
            def rd(dst, base, off):
                if R == 4: a(f"ds_read_b64 {vr(dst,2)}, v{base} offset:{off}"); a(f"ds_read_b64 {vr(dst+2,2)}, v{base} offset:{off+8}")
                elif R == 2: a(f"ds_read_b64 {vr(dst,2)}, v{base} offset:{off}")
                else: a(f"ds_read_b32 v{dst}, v{base} offset:{off}")
            for ch in range(6):
                uo = UB + ch * 4 * PS + 256 + 2 * I0
                if R == 4: a(f"ds_read_b64 {vr(U+2*ch,2)}, v5 offset:{uo}")
                elif R == 2: a(f"ds_read_b32 v{U+2*ch}, v5 offset:{uo}")
                else: a(f"ds_read_u16 v{U+2*ch}, v5 offset:{uo}")
            for ch in range(6):
                by, bo, off = (2, 8, YBASE[ch] - ST) if ch < 4 else (10, 11, YBASE[ch] - YBASE[4])
                rd(Y + 4 * ch, by, off); rd(O + 4 * ch, bo, off)
            DS = 46
            for ch in range(6):
                if ch & 1: a(f"v_and_b32 v{DS+ch}, 0xffff0000, v{vDS+ch//2}")
                else: a(f"v_lshlrev_b32 v{DS+ch}, 16, v{vDS+ch//2}")
            nrd = 12 * (2 if R == 4 else 1)
            a(f"s_waitcnt lgkmcnt({min(nrd, 15)})")
            if nrd > 15: pass
            for j in range(R):
                for ch in range(6):
                    d = S + 8 * j + ch; u = U + 2 * ch + (j >> 1)
                    if j & 1: a(f"v_and_b32 v{d}, 0xffff0000, v{u}")
                    else: a(f"v_lshlrev_b32 v{d}, 16, v{u}")
                    a(f"v_mul_f32 v{d}, v{d}, v{DS+ch}")
            a("s_waitcnt lgkmcnt(0)")
            for j in range(R):
                for ch in range(6):
                    d = S + 8 * j + ch; y = Y + 4 * ch + j
                    a(f"v_fmac_f32 v{y}, v9, v{O+4*ch+j}")
                    a(f"v_cvt_pk_bf16_f32 v{d}, v{y}, v{d}")
                    a(f"v_lshlrev_b32 v{y}, 16, v{d}"); a(f"v_and_b32 v{d}, 0xffff0000, v{d}")
                    a(f"v_add_f32 v{d}, v{d}, v{y}")
                for ch in range(0, 6, 2):
                    d = S + 8 * j + ch
                    a(f"v_cvt_pk_bf16_f32 v{d+1}, v{d}, v{d+1}")
                    a(f"v_lshlrev_b32 v{d}, 16, v{d+1}"); a(f"v_and_b32 v{d+1}, 0xffff0000, v{d+1}")
                Lm, Le = a.newlabel("L_mid"), a.newlabel("L_ste")
                a(f"s_cmp_eq_u32 s{sMID}, 1"); a(f"s_cbranch_scc1 {Lm}")
                for par in range(2):
                    a(f"s_mov_b64 vcc, s[{74+2*par}:{75+2*par}]")
                    T_ = 176 + 8 * j + 4 * par
                    for k in range(3):
                        own, oth = S + 8 * j + 3 * par + k, S + 8 * j + 3 * (1 - par) + k
                        a(f"v_cndmask_b32_dpp v{T_+k}, v{oth}, v{own}, vcc quad_perm:[1,0,3,2] row_mask:0xf bank_mask:0xf")
                    a(f"s_add_u32 s{sT1}, s{sT0}, {18432*j + 4608*par}")
                    if c.skip_a_store: continue
                    a(f"buffer_store_dwordx3 {vr(T_,3)}, v4, s[{sOS}:{sOS+3}], s{sT1} offen{c.out_flags}")
                a(f"s_branch {Le}")
                a.label(Lm)
                a(f"s_add_u32 s{sT1}, s{sT0}, {18432*j}")
                if not c.skip_a_store: a(f"buffer_store_dwordx4 {vr(S+8*j,4)}, v12, s[{sOS}:{sOS+3}], s{sT1} offen{c.out_flags}")
                a.label(Le)

        Lh0, Lh1, Lhe, Lce = a.newlabel("L_h0"), a.newlabel("L_h1"), a.newlabel("L_he"), a.newlabel("L_ce")
        a("s_cmp_ge_u32 s3, 4"); a(f"s_cbranch_scc1 {Lh0}")
        FLG = ST + 8 * SW
        def signal(val):
            def f(lg=None):
                a(f"v_mov_b32 v45, {val}"); a("ds_write_b32 v38, v45")
                if lg is not None: lg.append(("w",))
            return f
        def await_(vf, vh):
            L, Lo = a.newlabel("L_aw"), a.newlabel("L_awok")
            a(f"s_mov_b32 s{sPASS}, {c.spin_max}")
            a.label(L)
            a("ds_read_b128 v[2:5], v39"); a("ds_read_b128 v[6:9], v39 offset:16")
            a("s_waitcnt lgkmcnt(0)")
            a("v_min3_u32 v2, v2, v3, v4"); a("v_min3_u32 v6, v6, v7, v8"); a("v_min_u32 v2, v2, v5"); a("v_min_u32 v6, v6, v9")
            a(f"v_cmp_gt_u32 vcc, {vf}, v2"); a(f"v_cmp_gt_u32 s[6:7], {vh}, v6"); a("s_or_b64 vcc, vcc, s[6:7]")
            a(f"s_cbranch_vccz {Lo}")
            a("s_sleep 1")
            a(f"s_sub_u32 s{sPASS}, s{sPASS}, 1"); a(f"s_cbranch_scc0 {L}")
            a.label(Lo)
        def rec_combine(its):
            r = []
            combine(its, a=r.append)
            return r
        a(f"s_lshl_b32 s{sT0}, s3, 2"); a(f"s_add_u32 s{sT0}, s{sT0}, {FLG}"); a(f"v_mov_b32 v38, s{sT0}")
        a("s_waitcnt vmcnt(0)")
        a("s_barrier")
        self.stamp(4)
        if c.f_skip:
            signal(2)()
        elif c.f_whole:
            conv([0, 1, 2, 3]); self.stamp(8); combine([0, 1, 2, 3]); signal(2)()
        else:
            if c.f_prio: a("s_setprio 2")
            conv([0, 1])
            if c.f_prio == 1: a("s_setprio 0")
            def sig1(lg):
                signal(1)(lg)
                if c.f_prio == 2: a("s_setprio 0")
            conv([2, 3], fill=rec_combine([0, 1]), after=sig1)
            self.stamp(8)
            combine([2, 3])
        a(f"s_branch {Lce}")
        a.label(Lh0)
        self.stamp(4)
        a(f"s_lshl_b32 s{sT0}, s3, 2"); a(f"s_add_u32 s{sT0}, s{sT0}, {FLG}"); a(f"v_mov_b32 v38, s{sT0}"); a(f"v_mov_b32 v39, {FLG}")
        if c.h_skip: a(f"s_branch {Lhe}")
        a(f"s_cmp_eq_u32 s{sMID}, 1"); a(f"s_cbranch_scc1 {Lhe}")
        a("s_bitcmp1_b32 s3, 0"); a(f"s_cbranch_scc1 {Lh1}")
        conv([0, 3]); combine([0, 3]); a(f"s_branch {Lhe}")
        a.label(Lh1)
        conv([1, 2]); combine([1, 2])
        a.label(Lhe)
        signal(1)()
        if c.a_prio: a("s_setprio 0")
        self.stamp(8)
        a("v_and_b32 v13, 255, v0")
        a("s_waitcnt vmcnt(0)")
        if not c.no_epi1:
            await_(1, 1)
            epilogue(4, 0, 13)
            if c.wbl2 & 1:
                Lq = a.newlabel("L_nowb")
                a(f"s_cmp_lg_u32 s{sE}, 4"); a(f"s_cbranch_scc1 {Lq}")
                a("buffer_wbl2 sc1")
                a.label(Lq)
        a.label(Lce)
        self.stamp(5)
        a("s_waitcnt lgkmcnt(0)")
        a("s_barrier")
        self.stamp(6)
        epilogue(2, 1024, 0)
        self.stamp(7)
        if c.wbl2 & 2:
            Lq = a.newlabel("L_nowb")
            a(f"s_cmp_lg_u32 s{sE}, 5"); a(f"s_cbranch_scc1 {Lq}")
            a("s_waitcnt vmcnt(0)"); a("buffer_wbl2 sc1")
            a.label(Lq)
        if c.stamps and c.endwait: a("s_waitcnt vmcnt(0)"); self.stamp(1)
        if c.stamps: self.store_stamps(9, sWS)
        self.lag(c.lag_a)
        self.span_end(9, [2, 3, 4, 8, 5, 6])
        a.label("L_exit")
        a("s_endpgm")

    def build(self):
        self.prologue(); self.roleB(); self.roleA()
        body = self.a.finalize()
        ref = open(f"cdna_kernels/{NAME}.s.ref").read()
        head = ref[:ref.index("; @launch")]
        return head + f"""; @launch grid=({GRID},1,1) block=(512,1,1) lds={LDS_TOTAL}
{DOC}.amdgcn_target "amdgcn-amd-amdhsa--gfx950"
.text
.globl {KN}
.p2align 8
.type {KN},@function
{KN}:
{body}
L_codeend:
.if (L_codeend - {KN}) > {self.c.np_kb*1024}
.error "code larger than prefetch window"
.endif
.fill ({self.c.np_kb*1024} - (L_codeend - {KN})) / 4, 4, 0xbf810000
.section .rodata,"a"
.p2align 6
.amdhsa_kernel {KN}
  .amdhsa_next_free_vgpr 256
  .amdhsa_next_free_sgpr 102
  .amdhsa_accum_offset 256
  .amdhsa_group_segment_fixed_size 0
  .amdhsa_kernarg_size 168
  .amdhsa_user_sgpr_count 2
  .amdhsa_user_sgpr_kernarg_segment_ptr 1
  .amdhsa_system_sgpr_workgroup_id_x 1
.end_amdhsa_kernel
"""

if __name__ == "__main__":
    cfg = Cfg()
    out = f"cdna_kernels/{NAME}.s"
    for arg in sys.argv[1:]:
        if arg.startswith("-o="): out = arg[3:]
        else:
            k, v = arg.split("="); setattr(cfg, k, eval(v))
    open(out, "w").write(Gen(cfg).build())
    import subprocess
    r = subprocess.run(["clang", "-x", "assembler", "-target", "amdgcn-amd-amdhsa", "-mcpu=gfx950", "-c", out, "-o", "chk.o"], capture_output=True, text=True)
    print("wrote", out, "OK" if r.returncode == 0 else "ASM ERROR\n" + r.stderr[:2000])
```

```python
import sys, os
sys.path.insert(0, os.path.dirname(os.path.abspath(__file__)))
from asmlib import *

NAME = "concat_heads__ssm_conv_s4__ssm_conv_s5__prompt"
KN = NAME + "_kernel"

DOC = '; ---------------------------------------------------------------------------------------------\n; Role B (144 workgroups, chunk c of 128 steps x slice j of 64 states):\n;   raw = x * [B_re | B_im]^T (MFMA, LDS-DMA ring), local scan in registers, chunk aggregates\n;   convolution as Toeplitz MFMAs on four input phases with shifted accumulators, then\n; ---------------------------------------------------------------------------------------------\n'

class Cfg:
    stamps = False
    flag_stride = 4
    spin_max = 200000
    np_kb = 33
    prefetch = True
    l2pf = True
    samexcd = False
    span = False
    g1stamps = False
    g1_noread = False
    g1_nomfma = False
    g1_nodma = False
    g1_noside = False
    pretouch_b = False
    tlbwarm = False
    jstamp = False
    pt_stage = -1
    cv_nob = False
    cv_noa = False
    cv_nomfma = False
    h_skip = False
    f_skip = False
    f_whole = False
    no_epi1 = False
    m_s0 = 5
    fl_first = 0
    fl_sleep = 2
    lag_a = 0
    lag_b = 0
    hold_ns = 0
    mid_skip = True
    g2check = False
    fl_flags = ' sc1'
    fl_flags2 = ' sc1'
    dualflag = False
    win1 = (1, 2)
    g1mix = True
    spread = False
    w2delay = 0
    g2refresh = 5
    wbl2 = 0
    f_prio = 2
    fill_frac = 0.3
    fill_skip = 3
    pfc_spread = ()
    pfc_stage = 6
    rot = 'none'
    pf_c_pass = 2
    pf_mid = ''
    touch_small = True
    own_touch = ''
    touch_fl = ''
    touch_h = ''
    cing1 = ()
    pf_early = 'st'
    pf_late = 'u'
    gather_pts = (3, 10, 17, 24)
    g2tail = 0
    g2lead = 12
    pretouch = False
    a_prio = True
    a_pf = 5
    clk = False
    hst_flags = ' sc1'
    hload_flags = ' sc1'
    skip_a_store = False
    skip_b_store = False
    a_exit = False
    b_exit = False
    endwait = False
    out_flags_b = ''
    out_flags = ''

NB, NA = 144, 108
GRID = 255
WS_AGG, WS_FLG, WS_XI, WS_H, WS_STAMP = 0x1000, 0x40000, 0x60000, 0x100000, 0x800000
WS_SIZE = 0x900000
XSZ, BSZ, OUTSZ = 2359296, 663552, 9437184
LDS_TOTAL = 163840
LOG2E = 0x3fb8aa3b
INV2PI = "0.15915494"

pAu, pAre, pAim, pABre, pABim, pACre, pACim, pAdt, pAD, pX, pLre, pLim, pBre, pBim, pCre, pCim, pBdt, pBD, pOut, pDbg, pWs = [16 + 2 * i for i in range(21)]
def sp(p): return f"s[{p}:{p+1}]"
def vr(a, n): return f"v[{a}:{a+n-1}]"

def cmul(a, dst, x, y):
    a(f"v_pk_mul_f32 {vr(dst,2)}, {vr(x,2)}, {vr(y,2)} op_sel:[0,0] op_sel_hi:[0,1]")
    a(f"v_pk_fma_f32 {vr(dst,2)}, {vr(x,2)}, {vr(y,2)}, {vr(dst,2)} op_sel:[1,1,0] op_sel_hi:[1,0,1] neg_lo:[0,1,0]")
def cfma(a, dst, x, y):
    a(f"v_pk_fma_f32 {vr(dst,2)}, {vr(x,2)}, {vr(y,2)}, {vr(dst,2)} op_sel:[0,0,0] op_sel_hi:[0,1,1]")
    a(f"v_pk_fma_f32 {vr(dst,2)}, {vr(x,2)}, {vr(y,2)}, {vr(dst,2)} op_sel:[1,1,0] op_sel_hi:[1,0,1] neg_lo:[0,1,0]")
def cexp(a, dst, va, vb, scale, t0, t1):
    if scale is None:
        a(f"v_exp_f32 v{t0}, v{va}"); a(f"v_fract_f32 v{t1}, v{vb}")
    else:
        a(f"v_mul_f32 v{t0}, {scale}, v{va}"); a(f"v_mul_f32 v{t1}, {scale}, v{vb}")
        a(f"v_exp_f32 v{t0}, v{t0}"); a(f"v_fract_f32 v{t1}, v{t1}")
    a(f"v_cos_f32 v{dst}, v{t1}"); a(f"v_sin_f32 v{dst+1}, v{t1}")
    a(f"v_mul_f32 v{dst}, v{t0}, v{dst}"); a(f"v_mul_f32 v{dst+1}, v{t0}, v{dst+1}")
def f2u(x):
    import struct
    return "0x%08x" % struct.unpack("<I", struct.pack("<f", x))[0]
def srd(a, s, p, size):
    a(f"s_mov_b32 s{s}, s{p}"); a(f"s_mov_b32 s{s+1}, s{p+1}"); a(f"s_mov_b32 s{s+2}, {size}"); a(f"s_mov_b32 s{s+3}, 0x20000")

class Gen:
    def __init__(self, cfg):
        self.c = cfg; self.a = Asm(); self.nst = 0; self.inB = False
    def stamp(self, k, g1=False):
        if self.c.g1stamps and self.inB and not g1 and k != 0: return
        if self.c.stamps or self.c.span: self.a(f"{'s_memtime' if self.c.clk else 's_memrealtime'} s[{84+2*k}:{85+2*k}]")
    def store_stamps(self, n, sWS):
        if not self.c.stamps: return
        a = self.a
        a("s_waitcnt lgkmcnt(0)")
        a("s_lshl_b32 s58, s2, 3"); a("s_add_u32 s58, s58, s3"); a("s_lshl_b32 s58, s58, 6"); a(f"s_add_u32 s58, s58, {WS_STAMP}")
        a("s_mov_b64 exec, 1")
        a("v_mov_b32 v2, 0")
        for k in range(n):
            a(f"v_mov_b32 v3, s{84+2*k}")
            a(f"buffer_store_dword v3, v2, s[{sWS}:{sWS+3}], s58 offen offset:{4*k}")
        a("s_mov_b64 exec, -1")

    def lag(self, ns):
        if not ns: return
        a = self.a; L = a.newlabel("L_lag")
        a("s_waitcnt vmcnt(0)"); a("s_memrealtime s[100:101]"); a("s_waitcnt lgkmcnt(0)")
        a.label(L)
        a("s_sleep 2"); a("s_memrealtime s[98:99]"); a("s_waitcnt lgkmcnt(0)")
        a("s_sub_u32 s98, s98, s100"); a(f"s_cmp_lt_u32 s98, {ns//10}"); a(f"s_cbranch_scc1 {L}")
    def span_end(self, word, ks):
        if not self.c.span: return
        a = self.a
        a("s_mul_i32 s58, s2, 5"); a("s_add_u32 s58, s58, s3"); a("s_and_b32 s58, s58, 15"); a("s_cmp_lg_u32 s58, 0"); a("s_cbranch_scc1 L_exit")
        a("s_waitcnt vmcnt(0)")
        a("s_memrealtime s[58:59]"); a("s_waitcnt lgkmcnt(0)")
        a("s_mov_b64 exec, 1")
        a("s_not_b32 s84, s84")
        a("v_mov_b32 v2, 0"); a("v_mov_b32 v4, s84")
        a(f"global_atomic_umax v2, v4, {sp(pDbg)} offset:4 sc1")
        for i, k in enumerate(ks):
            a(f"v_mov_b32 v{5+i}, s{84+2*k}")
            a(f"global_atomic_umax v2, v{5+i}, {sp(pDbg)} offset:{4*(word+i)} sc1")
        a("v_mov_b32 v3, s58")
        a(f"global_atomic_umax v2, v3, {sp(pDbg)} offset:{4*(word+len(ks))} sc1")

    def prologue(self):
        a, c = self.a, self.c
        self.stamp(0)
        if c.hold_ns: a("s_memrealtime s[100:101]")
        a("s_load_dwordx16 s[16:31], s[0:1], 0")
        a("s_load_dwordx16 s[32:47], s[0:1], 64")
        a("s_load_dwordx8 s[48:55], s[0:1], 128")
        a("s_load_dwordx2 s[56:57], s[0:1], 160")
        a(f"s_cmp_ge_u32 s2, {GRID}")
        a("s_cbranch_scc1 L_exit")
        a("v_lshrrev_b32 v2, 6, v0")
        a("v_and_b32 v1, 63, v0")
        a("v_readfirstlane_b32 s3, v2")
        a("s_and_b32 s4, s2, 7")
        a("s_lshr_b32 s5, s2, 3")
        if c.prefetch:
            a("s_getpc_b64 s[6:7]")
            a.label("L_pc")
            a("s_lshl_b32 s8, s5, 3"); a("s_add_u32 s8, s8, s3"); a("s_and_b32 s8, s8, 63"); a(f"s_min_u32 s8, s8, {c.np_kb-1}"); a("s_lshl_b32 s8, s8, 10")
            a(f"s_sub_u32 s6, s6, L_pc-{KN}"); a("s_subb_u32 s7, s7, 0")
            a("s_add_u32 s6, s6, s8"); a("s_addc_u32 s7, s7, 0")
            a("v_lshlrev_b32 v3, 4, v1")
            a.vmem("global_load_dwordx4 v[252:255], v3, s[6:7]", "pf")
        a("s_and_b32 s9, s2, 1")
        a("s_lshl_b32 s8, s9, 2"); a("s_sub_u32 s8, 20, s8")
        a("s_cmp_ge_u32 s5, s8")
        a("s_cbranch_scc1 L_roleA")

    def pf_b(self, sE, t0, t1, vt, vd):
        a = self.a
        a(f"s_min_u32 s{t0}, s{sE}, 89")
        a(f"s_mul_i32 s{t1}, s{t0}, 3641"); a(f"s_lshr_b32 s{t1}, s{t1}, 16")
        a(f"s_mul_i32 s59, s{t1}, 18"); a(f"s_sub_u32 s{t0}, s{t0}, s59")
        a(f"s_add_u32 s59, s{t1}, 4"); a(f"s_add_u32 s{t1}, s{t1}, 2"); a(f"s_cmp_ge_u32 s{t1}, 4"); a(f"s_cselect_b32 s{t1}, s59, s{t1}")
        a(f"s_sub_u32 s59, s{t0}, 9"); a(f"s_cmp_ge_u32 s{t0}, 9"); a(f"s_cselect_b32 s{t0}, s59, s{t0}")
        a(f"s_cselect_b32 s6, s{pBim}, s{pBre}"); a(f"s_cselect_b32 s7, s{pBim+1}, s{pBre+1}")
        a(f"s_add_u32 s{t1}, s{t1}, s{t0}"); a(f"s_sub_u32 s59, s{t1}, 9"); a(f"s_cmp_ge_u32 s{t1}, 9"); a(f"s_cselect_b32 s{t1}, s59, s{t1}")
        a(f"s_mul_i32 s{t0}, s{t0}, {64*1152}"); a(f"s_lshl_b32 s{t1}, s{t1}, 7"); a(f"s_add_u32 s{t0}, s{t0}, s{t1}")
        a(f"v_mul_u32_u24 v{vt}, 1152, v1"); a(f"v_add_u32 v{vt}, s{t0}, v{vt}")
        a.vmem(f"global_load_dword v{vd}, v{vt}, s[6:7]", "pf2")

    def pf_s(self, s0, ns, t0, t1, vt, vd, idx=None, optional=False):
        a = self.a; sODD, sNA = self.sODD, self.sNA
        a(f"s_mul_i32 s{t0}, s3, s{sNA}"); a(f"s_add_u32 s{t0}, s{t0}, s5")
        a(f"s_cmp_eq_u32 s{sODD}, 0")
        a(f"s_cselect_b32 s59, {18*ns-1}, {16*ns-1}") if 18 * ns - 1 <= 64 else (a(f"s_movk_i32 s59, {18*ns-1}"), a(f"s_cselect_b32 s59, s59, {16*ns-1}"))
        a(f"s_min_u32 s{t0}, s{t0}, s59")
        a(f"s_cmp_eq_u32 s{sODD}, 0"); a("s_movk_i32 s59, 3641"); a("s_cselect_b32 s59, s59, 0x1000"); a("s_cselect_b32 s79, 18, 16")
        a(f"s_mul_i32 s{t1}, s{t0}, s59"); a(f"s_lshr_b32 s{t1}, s{t1}, 16")
        a(f"s_mul_i32 s59, s{t1}, s79"); a(f"s_sub_u32 s{t0}, s{t0}, s59")
        a(f"s_add_u32 s{t1}, s{t1}, {s0}"); a(f"s_lshl_b32 s{t1}, s{t1}, 7")
        a(f"s_lshr_b32 s79, s79, 1"); a("s_add_u32 s79, s79, 4")
        a(f"s_cmp_lt_u32 s{t0}, s79")
        a(f"s_cselect_b32 s6, s{pBre}, s{pBim}"); a(f"s_cselect_b32 s7, s{pBre+1}, s{pBim+1}"); a("s_cselect_b32 s59, 8, s79")
        a(f"s_sub_u32 s59, s{t0}, s59"); a(f"s_mul_i32 s79, s{sODD}, 5"); a("s_add_u32 s59, s59, s79")
        a(f"s_and_b32 s79, s4, 6"); a(f"s_lshl2_add_u32 s79, s79, s{t0}")
        a(f"s_cmp_lt_u32 s{t0}, 8")
        a(f"s_cselect_b32 s6, s{pX}, s6"); a(f"s_cselect_b32 s7, s{pX+1}, s7"); a(f"s_cselect_b32 s{t0}, s79, s59")
        a(f"s_mul_i32 s{t0}, s{t0}, {64*1152}"); a(f"s_add_u32 s{t0}, s{t0}, s{t1}")
        a(f"v_mul_u32_u24 v{vt}, 1152, v1"); a(f"v_add_u32 v{vt}, s{t0}, v{vt}")
        a.vmem(f"global_load_dword v{vd}, v{vt}, s[6:7]", "pf2", optional=optional)

    def roleB(self):
        a, c = self.a, self.c
        RING, TILE, EXCH = 4096, 0, 151552
        self.inB = True
        sC, sJ, sWM, sWN = 8, 9, 10, 11
        sD, sQ, sWL = 60, 64, 68
        sXCC, sXI, sHB, sCOL = 69, 70, 6, 71
        sCD, sCQ = 72, 76
        sOS, sWS = 44, 80
        sTAG, sCNT, sT0, sT1 = 12, 13, 14, 15
        vDe, vDo, vCe, vCo_ = 4, 5, 246, 247
        vA, vA2, vB, vB2 = 16, 20, 24, 28
        ACC2, R_, I_, FR = 32, 64, 80, 96
        Qr, Qi, W_, XR = 144, 160, 176, 192
        vLam, vNLi, vL16, vCo, vMu, vL256, vL16h, vPre = 216, 218, 220, 222, 224, 226, 230, 232
        vZa, vZb = 236, 237
        vXA = 208
        vP0 = 240
        if c.b_exit: a("s_endpgm")
        a(f"s_mul_i32 s{sT0}, s5, 13"); a(f"s_lshr_b32 s{sT0}, s{sT0}, 6"); a(f"s_lshr_b32 s{sT1}, s5, 2")
        a("s_cmp_eq_u32 s9, 0"); a(f"s_cselect_b32 s{sT0}, s{sT0}, s{sT1}"); a(f"s_cselect_b32 s{sT1}, 5, 4"); a("s_cselect_b32 s58, 0, 5")
        a(f"s_mul_i32 s{sT1}, s{sT1}, s{sT0}"); a(f"s_sub_u32 s{sJ}, s5, s{sT1}"); a(f"s_add_u32 s{sJ}, s{sJ}, s58")
        a(f"s_lshr_b32 s{sC}, s4, 1"); a(f"s_lshl2_add_u32 s{sC}, s{sC}, s{sT0}")
        a(f"s_and_b32 s{sWM}, s3, 3"); a(f"s_lshr_b32 s{sWN}, s3, 2")
        a(f"s_lshl_b32 s{sT0}, s{sC}, 7"); a(f"s_lshl_b32 s{sT1}, s3, 5"); a(f"s_add_u32 s{sT0}, s{sT0}, s{sT1}")
        a(f"s_and_b32 s{sT1}, s3, 1"); a(f"s_lshl_b32 s{sT1}, s{sT1}, 5"); a(f"s_lshl_b32 s58, s{sJ}, 6"); a(f"s_add_u32 s{sT1}, s{sT1}, s58")
        a(f"s_and_b32 s{sCQ}, s3, 1"); a(f"s_add_u32 s{sCQ}, s{sCQ}, s58"); a(f"s_mul_i32 s{sCQ}, s{sCQ}, 1152")
        a("s_cmp_lt_u32 s3, 4")
        a(f"s_cselect_b32 s{sT0}, s{sT0}, s{sT1}")
        a(f"s_movk_i32 s{sT1}, 9216"); a(f"s_cselect_b32 s{sT1}, 4608, s{sT1}")
        a("s_cselect_b64 vcc, -1, 0")
        a(f"s_mul_i32 s{sQ}, s{sT0}, 1152")
        for q in range(1, 4): a(f"s_add_u32 s{sQ+q}, s{sQ+q-1}, s{sT1}")
        a(f"s_lshl_b32 s{sWL}, s3, 12")
        if c.rot == "full":
            a(f"s_and_b32 s7, s{sC}, 1"); a(f"s_lshl_b32 s{sCOL}, s7, 2"); a(f"s_add_u32 s{sCOL}, s{sCOL}, s{sJ}")
            a(f"s_sub_u32 s{sT0}, s{sCOL}, 9"); a(f"s_cmp_ge_u32 s{sCOL}, 9"); a(f"s_cselect_b32 s{sCOL}, s{sT0}, s{sCOL}"); a(f"s_lshl_b32 s{sCOL}, s{sCOL}, 7")
            a("s_mul_i32 s7, s7, 5")
        elif c.rot in ("r3", "cc"):
            a(f"s_and_b32 s{sCOL}, s{sC}, 1"); a(f"s_lshl_b32 s{sCOL}, s{sCOL}, 2")
            if c.rot == "r3":
                a(f"s_mul_i32 s{sT0}, s{sJ}, 11"); a(f"s_lshr_b32 s{sT0}, s{sT0}, 5"); a(f"s_mul_i32 s{sT0}, s{sT0}, 3"); a(f"s_sub_u32 s{sT0}, s{sJ}, s{sT0}")
                a(f"s_mul_i32 s{sT0}, s{sT0}, 3"); a(f"s_add_u32 s{sCOL}, s{sCOL}, s{sT0}")
                a(f"s_sub_u32 s{sT0}, s{sCOL}, 9"); a(f"s_cmp_ge_u32 s{sCOL}, 9"); a(f"s_cselect_b32 s{sCOL}, s{sT0}, s{sCOL}")
            a(f"s_sub_i32 s7, s{sJ}, s{sCOL}"); a(f"s_add_u32 s{sT0}, s7, 9"); a("s_cmp_lt_i32 s7, 0"); a(f"s_cselect_b32 s7, s{sT0}, s7")
            a(f"s_lshl_b32 s{sCOL}, s{sCOL}, 7")
        else:
            a(f"s_mov_b32 s{sCOL}, 0"); a(f"s_mov_b32 s7, s{sJ}")
        a("v_lshrrev_b32 v2, 3, v1")
        a("v_and_b32 v3, 3, v2"); a("v_lshrrev_b32 v6, 5, v1"); a("v_lshl_add_u32 v3, v6, 4, v3")
        a("v_cndmask_b32 v3, v2, v3, vcc")
        a("v_mul_u32_u24 v3, 1152, v3")
        a("v_lshrrev_b32 v7, 4, v1"); a("v_xor_b32 v7, v7, v1"); a("v_and_b32 v7, 7, v7"); a("v_lshlrev_b32 v7, 4, v7")
        a(f"v_add_u32 v{vDe}, v7, v3"); a(f"v_xor_b32 v{vDo}, 64, v{vDe}")
        a(f"s_lshl_b32 s{sT1}, s{sWN}, 5"); a(f"s_add_u32 s58, s58, s{sT1}")
        a("v_and_b32 v13, 31, v1"); a("v_add_u32 v12, s58, v13"); a("v_lshlrev_b32 v12, 1, v12")
        a("s_waitcnt lgkmcnt(0)")
        a.vmem(f"global_load_ushort v{vP0}, v12, {sp(pLre)}", "par")
        a.vmem(f"global_load_ushort v{vP0+1}, v12, {sp(pLim)}", "par")
        a.vmem(f"global_load_ushort v{vP0+2}, v12, {sp(pBdt)}", "par")
        a("s_cmp_lt_u32 s3, 6")
        a(f"s_cselect_b32 s{sD}, s{pBre}, s{pBim}"); a(f"s_cselect_b32 s{sD+1}, s{pBre+1}, s{pBim+1}")
        a("s_cmp_lt_u32 s3, 4")
        a(f"s_cselect_b32 s{sD}, s{pX}, s{sD}"); a(f"s_cselect_b32 s{sD+1}, s{pX+1}, s{sD+1}")
        a(f"s_mov_b32 s{sD+2}, {BSZ}"); a(f"s_cselect_b32 s{sD+2}, {XSZ}, s{sD+2}")
        a(f"s_mov_b32 s{sD+3}, 0x20000")
        def dma1(s, q):
            if q == 0 and s > 0:
                a(f"s_add_u32 s{sCOL}, s{sCOL}, 128"); a(f"s_cmp_eq_u32 s{sCOL}, 1152"); a(f"s_cselect_b32 s{sCOL}, 0, s{sCOL}")
            a(f"s_add_u32 m0, s{sWL}, {RING + (s % 4) * 32768 + q * 1024}")
            a(f"s_add_u32 s{sT0}, s{sQ+q}, s{sCOL}")
            a.vmem(f"buffer_load_dwordx4 v{vDo if q & 1 else vDe}, s[{sD}:{sD+3}], s{sT0} offen lds", f"st{s}")
        def dmac1(u, q, optional=False):
            a(f"s_add_u32 m0, s{sWL}, {RING + u * 32768 + q * 1024}")
            a(f"s_add_u32 s{sT0}, s{sCQ+q}, s{25+u}")
            a.vmem(f"buffer_load_dwordx4 v{vCo_ if q & 1 else vCe}, s[{sCD}:{sCD+3}], s{sT0} offen lds", f"cu{u}", optional=optional)
        a("s_lshl_b32 s59, s2, 3"); a("s_add_u32 s59, s59, s3"); a(f"s_sub_u32 s{sCNT}, s59, 7")
        Ln = a.newlabel("L_noep")
        a(f"s_cmp_lg_u32 s{sCNT}, 0"); a(f"s_cbranch_scc1 {Ln}")
        a("v_mov_b32 v8, 0")
        a.vmem(f"global_load_dword v{vP0+5}, v8, {sp(pWs)} sc1", "ep", optional=True)
        a.label(Ln)
        for q in range(4): dma1(0, q)
        a(f"v_mul_u32_u24 v2, 2304, v2"); a(f"v_add_u32 v{vCe}, v7, v2"); a(f"v_xor_b32 v{vCo_}, 64, v{vCe}")
        a("v_and_b32 v7, 31, v1")
        for q in range(4): dma1(1, q)
        self.stamp(1)
        a("s_bitcmp1_b32 s3, 1")
        a(f"s_cselect_b32 s{sCD}, s{pCim}, s{pCre}"); a(f"s_cselect_b32 s{sCD+1}, s{pCim+1}, s{pCre+1}")
        a(f"s_mov_b32 s{sCD+2}, {BSZ}"); a(f"s_mov_b32 s{sCD+3}, 0x20000")
        sCOLB, sOWN = 16, 25
        a(f"s_lshl_b32 s{sCOLB+2}, s{sJ}, 7")
        if c.spread:
            a(f"s_sub_u32 s{sT0}, s{sJ}, 5"); a(f"s_min_u32 s{sT0}, s{sT0}, s{sJ}"); a(f"s_lshl_b32 s{sT0}, s{sT0}, 8")
            def step(r): a(f"s_add_u32 s{r}, s{r}, 128"); a(f"s_cmp_eq_u32 s{r}, 1152"); a(f"s_cselect_b32 s{r}, 0, s{r}")
            for k in range(1, 9):
                p1 = sCOLB + (2 + k) % 9
                a(f"s_mov_b32 s{sT1}, s{sT0}"); step(sT1)
                a(f"s_cmp_eq_u32 s{sT0}, s{sCOLB+2}"); a(f"s_cselect_b32 s{p1}, s{sT1}, s{sT0}")
                a(f"s_mov_b32 s{sT0}, s{p1}"); step(sT0)
        else:
            for k in range(1, 9):
                p0, p1 = sCOLB + (2 + k - 1) % 9, sCOLB + (2 + k) % 9
                a(f"s_add_u32 s{p1}, s{p0}, 128"); a(f"s_cmp_eq_u32 s{p1}, 1152"); a(f"s_cselect_b32 s{p1}, 0, s{p1}")
        a(f"s_cmp_eq_u32 s{sWN}, 0")
        for u in range(4): a(f"s_cselect_b32 s{sOWN+u}, s{sCOLB+2*u}, s{sCOLB+2*u+1}")
        for q in range(1, 4): a(f"s_add_u32 s{sCQ+q}, s{sCQ+q-1}, 18432")
        pC2 = 40
        a(f"s_mov_b64 s[40:41], {sp(pCre)}"); a(f"s_mov_b64 s[42:43], {sp(pCim)}")
        srd(a, sWS, pWs, WS_SIZE); srd(a, sOS, pOut, OUTSZ)
        a(f"s_lshl_b32 s{sT0}, s{sC}, 2"); a(f"s_add_u32 s{sT0}, s{sT0}, s{sWM}"); a(f"s_mul_i32 s{sT0}, s{sT0}, 72*1024"); a(f"s_add_u32 s58, s{sT0}, {WS_H}")
        a(f"s_lshl_b32 s{sT0}, s{sJ}, 13"); a(f"s_lshl_b32 s{sT1}, s{sWN}, 12"); a(f"s_add_u32 s{sT0}, s{sT0}, s{sT1}"); a(f"s_add_u32 s{sHB}, s{sT0}, s58")
        if c.pretouch_b == "ld":
            a("v_lshlrev_b32 v2, 7, v7")
            a.vmem(f"buffer_load_dword v248, v2, s[{sWS}:{sWS+3}], s{sHB} offen", "pt")
        if c.pretouch_b == "st":
            a("v_lshlrev_b32 v2, 4, v1")
            for k in range(4): a.vmem(f"buffer_store_dwordx4 v[4:7], v2, s[{sWS}:{sWS+3}], s{sHB} offen offset:{1024*k}", "pt")
        if c.pretouch_b == "st1":
            a("v_lshlrev_b32 v2, 7, v7")
            a.vmem(f"buffer_store_dword v4, v2, s[{sWS}:{sWS+3}], s{sHB} offen", "pt")
        a(f"s_lshl_b32 s{sT0}, s{sJ}, 7"); a(f"v_lshl_add_u32 v9, v7, 2, s{sT0}")
        a.vmem(f"global_load_dword v{vP0+3}, v9, {sp(pBD)}", "par2")
        a("v_lshrrev_b32 v2, 1, v7"); a("v_and_b32 v2, 7, v2"); a("v_xor_b32 v2, v2, v6"); a("v_lshlrev_b32 v2, 4, v2")
        a("v_lshl_add_u32 v2, v7, 7, v2")
        a(f"s_lshl_b32 s{sT0}, s{sWM}, 12"); a(f"s_lshl_b32 s{sT1}, s{sWN}, 12"); a(f"s_add_u32 s{sT1}, s{sT1}, 16384")
        for ks in range(4):
            a(f"v_xor_b32 v3, {32*ks}, v2")
            a(f"v_add_u32 v{vA+ks}, s{sT0}, v3"); a(f"v_add_u32 v{vB+ks}, s{sT1}, v3")
            a(f"v_add_u32 v{vA2+ks}, 0x10000, v{vA+ks}"); a(f"v_add_u32 v{vB2+ks}, 0x10000, v{vB+ks}")
        a("v_lshrrev_b32 v2, 2, v7"); a("v_lshlrev_b32 v3, 2, v6"); a("v_xor_b32 v2, v2, v3"); a("v_lshlrev_b32 v3, 4, v2")
        a("v_lshl_add_u32 v3, v6, 10, v3"); a("v_and_b32 v2, 3, v7"); a("v_lshl_add_u32 v3, v2, 2, v3")
        a(f"s_and_b32 s{sT1}, s7, 3"); a(f"s_lshl_b32 s{sT1}, s{sT1}, 15"); a(f"s_add_u32 s{sT0}, s{sT0}, s{sT1}")
        a(f"v_add_u32 v{vXA}, s{sT0}, v3")
        a(f"v_xor_b32 v{vXA+1}, 16, v{vXA}"); a(f"v_xor_b32 v{vXA+2}, 32, v{vXA}"); a(f"v_xor_b32 v{vXA+3}, 48, v{vXA}")

        class Rec:
            def __init__(s_): s_.l = []
            def __call__(s_, t): s_.l.append(t)
        side = Rec()
        side(f"v_lshlrev_b32 v{vP0}, 16, v{vP0}"); side(f"v_lshlrev_b32 v{vP0+1}, 16, v{vP0+1}"); side(f"v_lshlrev_b32 v{vP0+2}, 16, v{vP0+2}")
        side(f"v_mul_f32 v10, {LOG2E}, v{vP0+2}"); side("v_exp_f32 v10, v10")
        side("v_cvt_pk_bf16_f32 v10, v10, v10"); side("v_lshlrev_b32 v10, 16, v10")
        side(f"v_mul_f32 v{vZa}, v10, v{vP0}"); side(f"v_mul_f32 v{vZb}, v10, v{vP0+1}")
        side(f"v_mul_f32 v{vZa}, {LOG2E}, v{vZa}"); side(f"v_mul_f32 v{vZb}, {INV2PI}, v{vZb}")
        cexp(side, vLam, vZa, vZb, None, 10, 11)
        side(f"v_sub_f32 v{vNLi}, 0, v{vLam+1}")
        cexp(side, vL16, vZa, vZb, f2u(16.0), 10, 11)
        early = side; side = Rec()
        side(f"v_mul_f32 v10, v{vP0}, v{vP0}"); side(f"v_fmac_f32 v10, v{vP0+1}, v{vP0+1}"); side("v_rcp_f32 v10, v10")
        side(f"v_add_f32 v11, -1.0, v{vLam}")
        side(f"v_mul_f32 v12, v11, v{vP0}"); side(f"v_fmac_f32 v12, v{vLam+1}, v{vP0+1}")
        side(f"v_mul_f32 v13, v{vLam+1}, v{vP0}"); side(f"v_fma_f32 v13, -v11, v{vP0+1}, v13")
        side("v_add_f32 v10, v10, v10")
        side(f"v_mul_f32 v{vCo}, v12, v10"); side(f"v_mul_f32 v{vCo+1}, v13, v10")
        ncoef = len(side.l)
        cmul(side, 12, vCo, vLam); cmul(side, 14, 12, vLam); cmul(side, 10, vLam, vLam)
        side(f"v_mov_b32 v{Qr}, v12"); side(f"v_mov_b32 v{Qi}, v13"); side(f"v_mov_b32 v{Qr+1}, v14"); side(f"v_mov_b32 v{Qi+1}, v15")
        for r in range(2, 16, 2):
            side(f"v_pk_mul_f32 {vr(Qr+r,2)}, {vr(Qr+r-2,2)}, v[10:11] op_sel:[0,0] op_sel_hi:[1,0]")
            side(f"v_pk_mul_f32 {vr(Qi+r,2)}, {vr(Qi+r-2,2)}, v[10:11] op_sel:[0,0] op_sel_hi:[1,0]")
            side(f"v_pk_fma_f32 {vr(Qr+r,2)}, {vr(Qi+r-2,2)}, v[10:11], {vr(Qr+r,2)} op_sel:[0,1,0] op_sel_hi:[1,1,1] neg_lo:[0,1,0] neg_hi:[0,1,0]")
            side(f"v_pk_fma_f32 {vr(Qi+r,2)}, {vr(Qr+r-2,2)}, v[10:11], {vr(Qi+r,2)} op_sel:[0,1,0] op_sel_hi:[1,1,1]")
        side(f"s_lshl_b32 s{sT0}, s{sWM}, 1"); side(f"v_add_u32 v13, s{sT0}, v6"); side("v_lshlrev_b32 v13, 4, v13"); side("v_cvt_f32_u32 v13, v13")
        cexp(side, vL16h, vZa, vZb, "v13", 10, 11)
        nq = len(side.l)
        cexp(side, vL256, vZa, vZb, f2u(256.0), 10, 11)
        side("v_lshlrev_b32 v13, 7, v6"); side("v_cvt_f32_u32 v13, v13")
        cexp(side, W_, vZa, vZb, "v13", 10, 11)
        for m in range(1, 8): cmul(side, W_ + 2 * m, W_ + 2 * (m - 1), vL256)
        late, side = side, early
        sidepos = [0]
        def emit_side(n):
            for t in side.l[sidepos[0]: sidepos[0] + n]:
                if not c.g1_noside: a(t)
            sidepos[0] += n

        def xtile(s):
            if c.rot == 'full' and s not in (0, 5): return
            Lx = a.newlabel("L_nox")
            a(f"s_cmp_lg_u32 s7, {s}"); a(f"s_cbranch_scc1 {Lx}")
            for r in range(16):
                a_, b = r & 3, r >> 2
                a(f"ds_read_b32 v{XR+r}, v{vXA+(a_>>1)+2*(b>>1)} offset:{RING+(a_+16*(b&1)+4*(b>>1))*128}")
            a.label(Lx)
        lgq = []
        def readlist(s, half):
            hi = (s % 4) >= 2
            off = RING + (s & 1) * 32768
            A_, B_ = (vA2, vB2) if hi else (vA, vB)
            r = []
            for ks in (2 * half, 2 * half + 1):
                r.append((f"ds_read_b128 {vr(FR+12*ks,4)}, v{A_+ks} offset:{off}", (s, ks, 0)))
                r.append((f"ds_read_b128 {vr(FR+12*ks+4,4)}, v{B_+ks} offset:{off}", (s, ks, 1)))
                r.append((f"ds_read_b128 {vr(FR+12*ks+8,4)}, v{B_+ks} offset:{off+8192}", (s, ks, 2)))
            return r
        def emit_reads(r, n):
            for _ in range(n):
                if r:
                    t, key = r.pop(0); a(t); lgq.append(key)
        def lgwait(key):
            if key in lgq:
                i = lgq.index(key); a(f"s_waitcnt lgkmcnt({len(lgq) - 1 - i})"); del lgq[:i + 1]
        loads = [("x", 2, q, 0) for q in range(4)] + [("x", 3, q, 0) for q in range(4)]
        for st in range(4, 9): loads += [("x", st, q, st - 3) for q in range(4)]
        for u in c.cing1: loads += [("c", u, q, 5 + u) for q in range(4)]
        def issue(n, passed):
            for _ in range(n):
                if loads and loads[0][3] <= passed:
                    k_, i_, q, _b = loads.pop(0)
                    if c.g1_nodma: a.vm.append((f"st{i_}" if k_ == "x" else f"cu{i_}", True))
                    else: (dma1 if k_ == "x" else dmac1)(i_, q)
        def mfmas(s, half, nxt, passed, nload):
            if not c.g1mix: emit_reads(nxt, 6)
            for kk in range(2):
                ks = 2 * half + kk
                first = (s == 0 and ks == 0)
                lgwait((s, ks, 1))
                a(f"v_mfma_f32_32x32x16_bf16 {vr(R_,16)}, {vr(FR+12*ks,4)}, {vr(FR+12*ks+4,4)}, {'0' if first else vr(R_,16)}")
                emit_reads(nxt, 2)
                lgwait((s, ks, 2))
                a(f"v_mfma_f32_32x32x16_bf16 {vr(I_,16)}, {vr(FR+12*ks,4)}, {vr(FR+12*ks+8,4)}, {'0' if first else vr(I_,16)}")
                emit_reads(nxt, 2 - kk if kk == 0 else 2)
                issue(nload, passed)
        def tagcode():
            a.wait_vm("nonce")
            a(f"v_readfirstlane_b32 s{sTAG}, v{vP0+5}")
            Lok, Lsp = a.newlabel("L_tagok"), a.newlabel("L_tagspin")
            a(f"s_cmp_lg_u32 s{sTAG}, 0"); a(f"s_cbranch_scc1 {Lok}")
            a(f"s_mov_b32 s{sCNT}, {c.spin_max}")
            a("v_mov_b32 v2, 0")
            a.label(Lsp)
            a("s_sleep 1")
            a(f"global_load_dword v{vP0+5}, v2, {sp(pDbg)} sc1")
            a("s_waitcnt vmcnt(0)")
            a(f"v_readfirstlane_b32 s{sTAG}, v{vP0+5}")
            a(f"s_sub_u32 s{sCNT}, s{sCNT}, 1"); a(f"s_cbranch_scc1 {Lok}")
            a(f"s_cmp_eq_u32 s{sTAG}, 0"); a(f"s_cbranch_scc1 {Lsp}")
            a.label(Lok)
            a(f"v_mov_b32 v13, s{sTAG}"); a(f"v_mov_b32 v15, s{sTAG}")
            a(f"s_lshl1_add_u32 s{sT1}, s{sJ}, s{sWN}"); a(f"s_lshl_b32 s{sT1}, s{sT1}, 2"); a(f"v_mov_b32 v252, s{sT1}"); a(f"v_mov_b32 v253, s{sTAG}")
            a("v_xor_b32 v2, 1, v6"); a("v_lshl_add_u32 v248, v2, 10, v11")
            a("v_lshlrev_b32 v4, 4, v1")
            Lgi = a.newlabel("L_nogi")
            a(f"s_cmp_lg_u32 s{sWM}, 0"); a(f"s_cbranch_scc1 {Lgi}")
            for m in range(8):
                a(f"v_mov_b32 v{ACC2+4*m}, 0"); a(f"v_mov_b32 v{ACC2+4*m+1}, s{sTAG}"); a(f"v_mov_b32 v{ACC2+4*m+2}, 0"); a(f"v_mov_b32 v{ACC2+4*m+3}, s{sTAG}")
            a.label(Lgi)
            if c.samexcd:
                a(f"s_getreg_b32 s{sXCC}, hwreg(HW_REG_XCC_ID, 0, 4)")
                Lnx = a.newlabel("L_noxi")
                a("s_cmp_lg_u32 s3, 0"); a(f"s_cbranch_scc1 {Lnx}")
                a("s_mov_b64 exec, 1")
                a(f"s_lshl_b32 s{sT0}, s{sJ}, 3"); a(f"v_mov_b32 v2, s{sT0}"); a(f"v_mov_b32 v12, s{sXCC}")
                a.vmem(f"buffer_store_dwordx2 v[12:13], v2, s[{sWS}:{sWS+3}], s{sXI} offen sc1", "pub", optional=True)
                a("s_mov_b64 exec, -1")
                a.label(Lnx)
        def addrcode():
            a(f"s_lshl_b32 s{sT0}, s{sWN}, 8"); a(f"v_lshl_add_u32 v10, v7, 3, s{sT0}")
            a("v_lshlrev_b32 v11, 1, v10")
            a(f"v_add_u32 v10, {EXCH}, v10")
            a(f"s_lshl_b32 s{sT0}, s{sWM}, 10"); a(f"v_lshl_add_u32 v9, v6, 9, v10"); a(f"v_add_u32 v9, s{sT0}, v9")
            a(f"s_lshl_b32 s{sT0}, s{sJ}, 4"); a(f"s_add_u32 s{sT0}, s{sT0}, s{sC}"); a(f"s_lshl_b32 s59, s{sT0}, 10"); a(f"s_add_u32 s59, s59, {WS_AGG}")
            a(f"s_lshl_b32 s{sXI}, s{sC}, 7"); a(f"s_add_u32 s{sXI}, s{sXI}, {WS_XI}")
            a("v_min_u32 v249, 8, v1"); a("v_lshlrev_b32 v249, 3, v249")

        a(f"s_add_u32 s7, s7, s{sWL}"); a("s_and_b32 s7, s7, 0x400f")
        vTW, vTW2, vTR, vTR2, sFL = 212, 213, 214, 215, 30
        a(f"s_add_u32 s{sT0}, s{sWL}, {RING}")
        a("v_bfe_u32 v8, v1, 1, 2"); a("v_lshlrev_b32 v2, 1, v6"); a("v_xor_b32 v8, v8, v2"); a("v_lshlrev_b32 v8, 4, v8")
        a("v_lshl_add_u32 v8, v7, 6, v8"); a(f"v_add_u32 v{vTW}, s{sT0}, v8"); a(f"v_xor_b32 v{vTW2}, 16, v{vTW}")
        a("v_bfe_u32 v2, v1, 2, 2"); a("v_lshlrev_b32 v9, 6, v2"); a("v_lshl_add_u32 v9, v6, 11, v9")
        a("v_lshrrev_b32 v2, 1, v2"); a("v_bfe_u32 v10, v1, 4, 1"); a("v_lshlrev_b32 v10, 1, v10"); a("v_xor_b32 v2, v2, v10")
        a("v_bfe_u32 v10, v1, 1, 1"); a("v_xor_b32 v2, v2, v10"); a("v_lshl_add_u32 v9, v2, 4, v9")
        a("v_and_b32 v2, 1, v1"); a("v_lshl_add_u32 v9, v2, 3, v9"); a(f"v_add_u32 v{vTR}, s{sT0}, v9"); a(f"v_xor_b32 v{vTR2}, 32, v{vTR}")
        a(f"s_lshl2_add_u32 s{sFL}, s{sC}, s{sWM}"); a(f"s_lshl_b32 s{sFL}, s{sFL}, 7"); a(f"s_add_u32 s{sFL}, s{sFL}, {WS_FLG}")
        a.wait_vm("par")
        for t in side.l + late.l: a(t)
        a.wait_vm("st0")
        a("s_barrier")
        xtile(0)
        emit_reads(readlist(0, 0), 6)
        Ln = a.newlabel("L_noep")
        a(f"s_cmp_lg_u32 s{sCNT}, 0"); a(f"s_cbranch_scc1 {Ln}")
        a("s_mov_b64 exec, 1")
        a(f"v_add_u32 v{vP0+5}, 1, v{vP0+5}"); a(f"v_max_u32 v{vP0+5}, 1, v{vP0+5}"); a("v_mov_b32 v8, 0")
        a.vmem(f"global_store_dword v8, v{vP0+5}, {sp(pDbg)} sc1", "ep2", optional=True)
        a.vmem(f"global_store_dword v8, v{vP0+5}, {sp(pWs)} sc1", "ep2", optional=True)
        a("s_mov_b64 exec, -1")
        a.label(Ln)
        NS = (len(side.l) + 3) // 4
        for s in range(9):
            mfmas(s, 0, readlist(s, 1), s, 2 if s == 0 else 1)
            if s == 0:
                self.stamp(2)
            if s == 7: tagcode()
            if s < 8:
                a.wait_vm(f"st{s+1}", extra=" lgkmcnt(0)"); del lgq[:]
                a("s_barrier")
                if c.g1stamps: self.stamp(s + 1, g1=True)
                mfmas(s, 1, readlist(s + 1, 0), s + 1, 2 if s == 0 else 1)
                xtile(s + 1)
            else:
                mfmas(s, 1, [], s, 1)
            if s == 4:
                a("v_mov_b32 v2, 0")
                a.vmem(f"global_load_dword v{vP0+5}, v2, {sp(pDbg)} sc1", "nonce")
            if c.own_touch == f"s{s}":
                a("v_lshlrev_b32 v2, 7, v7")
                a.vmem(f"buffer_load_dword v255, v2, s[{sWS}:{sWS+3}], s{sHB} offen{c.touch_fl}", "pt")
            if s == c.pt_stage:
                a("v_lshlrev_b32 v2, 4, v1")
                for k in range(4): a.vmem(f"buffer_store_dwordx4 v[4:7], v2, s[{sWS}:{sWS+3}], s{sHB} offen offset:{1024*k}", "pt")
            if s in c.pfc_spread:
                k = c.pfc_spread.index(s); nl = 72 // len(c.pfc_spread)
                if k == 0:
                    a(f"s_bitcmp1_b32 s{sC}, 0")
                    a(f"s_cselect_b32 s38, s{pC2+2}, s{pC2}"); a(f"s_cselect_b32 s39, s{pC2+3}, s{pC2+1}")
                    a(f"s_mul_i32 s{sT0}, s{sJ}, {64*1152}"); a("s_add_u32 s38, s38, s{0}".format(sT0)); a("s_addc_u32 s39, s39, 0")
                a(f"s_mul_i32 s{sT0}, s3, {nl}"); a(f"s_add_u32 s{sT0}, s{sT0}, {k*8*nl+128}")
                a(f"v_add_u32 v2, s{sT0}, v1"); a("v_and_b32 v3, 63, v2"); a("v_mul_u32_u24 v3, 1152, v3"); a("v_lshrrev_b32 v2, 6, v2")
                a("v_add_u32 v14, -9, v2"); a("v_min_u32 v2, v2, v14"); a("v_lshl_add_u32 v2, v2, 7, v3")
                a(f"s_mov_b64 exec, {(1 << nl) - 1}")
                a.vmem(f"global_load_dword v{248+k}, v2, s[38:39]", "pfc")
                a("s_mov_b64 exec, -1")
            if s == c.pfc_stage and not c.pfc_spread:
                a(f"s_bitcmp1_b32 s{sC}, 0")
                a(f"s_cselect_b32 s38, s{pC2+2}, s{pC2}"); a(f"s_cselect_b32 s39, s{pC2+3}, s{pC2+1}")
                a(f"s_lshl_b32 s{sT0}, s{sJ}, 1"); a(f"s_bfe_u32 s{sT1}, s{sC}, 0x10001"); a(f"s_add_u32 s{sT0}, s{sT0}, s{sT1}"); a(f"s_mul_i32 s{sT0}, s{sT0}, {32*1152}")
                a(f"s_mul_i32 s{sT1}, s3, 36"); a(f"v_add_u32 v2, s{sT1}, v1"); a("v_and_b32 v3, 31, v2"); a("v_mul_u32_u24 v3, 1152, v3")
                a("v_lshrrev_b32 v2, 5, v2"); a("v_lshl_add_u32 v2, v2, 7, v3"); a(f"v_add_u32 v2, s{sT0}, v2")
                a("s_mov_b32 exec_hi, 15")
                a.vmem(f"global_load_dword v251, v2, s[38:39]", "pfc")
                a("s_mov_b32 exec_hi, -1")
            if s == 6:
                addrcode()
                if c.dualflag:
                    a(f"s_lshl2_add_u32 s{sT0}, s{sC}, s{sWM}"); a(f"s_lshl_b32 s{sT0}, s{sT0}, 7"); a(f"s_add_u32 s{sT0}, s{sT0}, {WS_XI}")
                    a("v_mov_b32 v2, 0")
                    a.vmem(f"buffer_load_dword v254, v2, s[{sWS}:{sWS+3}], s{sT0} offen sc1", "ft")
        assert not loads
        self.stamp(3)
        for r in range(1, 16):
            a(f"v_fmac_f32 v{R_+r}, v{vLam}, v{R_+r-1}"); a(f"v_fmac_f32 v{I_+r}, v{vLam}, v{I_+r-1}")
            a(f"v_fmac_f32 v{R_+r}, v{vNLi}, v{I_+r-1}"); a(f"v_fmac_f32 v{I_+r}, v{vLam+1}, v{R_+r-1}")
        a(f"ds_write2_b32 v9, v{R_+15}, v{I_+15} offset0:0 offset1:1")
        a("s_waitcnt lgkmcnt(0)")
        a("s_barrier")
        EX, G = 128, ACC2
        for s in range(8): a(f"ds_read_b64 {vr(EX+2*s,2)}, v10 offset:{512*s}")
        for s in range(1, 8):
            a(f"s_waitcnt lgkmcnt({7-s})")
            cfma(a, EX + 2 * s, EX + 2 * (s - 1), vL16)
        Lnp = a.newlabel("L_nopub")
        a(f"s_cmp_lg_u32 s{sWM}, 0"); a(f"s_cbranch_scc1 {Lnp}")
        a(f"v_mov_b32 v12, v{EX+14}"); a(f"v_mov_b32 v14, v{EX+15}")
        a("s_mov_b32 exec_hi, 0")
        a.vmem(f"buffer_store_dwordx4 v[12:15], v11, s[{sWS}:{sWS+3}], s59 offen sc1", "pub", optional=True)
        a("s_mov_b32 exec_hi, -1")
        a.label(Lnp)
        self.stamp(4)
        if c.own_touch == "pub":
            a("v_lshlrev_b32 v2, 7, v7")
            a(f"buffer_load_dword v255, v2, s[{sWS}:{sWS+3}], s{sHB} offen{c.touch_fl}")
        a("s_mov_b32 vcc_lo, 0"); a("s_mov_b32 vcc_hi, -1")
        def aggloads():
            Ldn = a.newlabel("L_aggdone")
            if c.samexcd: a(f"buffer_load_dwordx2 v[250:251], v249, s[{sWS}:{sWS+3}], s{sXI} offen sc1")
            for m in range(8):
                a(f"s_cmp_le_u32 s{sC}, {2*m}"); a(f"s_cbranch_scc1 {Ldn}")
                a(f"s_cmp_eq_u32 s{sC}, {2*m+1}"); a("s_cselect_b32 exec_hi, 0, -1")
                a(f"s_sub_u32 s{sT0}, s59, {(2+2*m)*1024}")
                a(f"buffer_load_dwordx4 {vr(G+4*m,4)}, v248, s[{sWS}:{sWS+3}], s{sT0} offen sc1")
            a.label(Ldn)
            a("s_mov_b32 exec_hi, -1")
        def common(a=a):
            for r in range(0, 16, 2):
                a(f"v_pk_mul_f32 v[238:239], {vr(R_+r,2)}, {vr(vCo,2)} op_sel:[0,0] op_sel_hi:[1,0]")
                a(f"v_pk_fma_f32 v[238:239], {vr(I_+r,2)}, {vr(vCo,2)}, v[238:239] op_sel:[0,1,0] op_sel_hi:[1,1,1] neg_lo:[0,1,0] neg_hi:[0,1,0]")
                a(f"v_pk_mul_f32 {vr(I_+r,2)}, {vr(I_+r,2)}, {vr(vCo,2)} op_sel:[0,0] op_sel_hi:[1,0]")
                a(f"v_pk_fma_f32 {vr(I_+r,2)}, {vr(R_+r,2)}, {vr(vCo,2)}, {vr(I_+r,2)} op_sel:[0,1,0] op_sel_hi:[1,1,1]")
                a(f"v_pk_mov_b32 {vr(R_+r,2)}, v[238:239], v[238:239] op_sel:[0,1]")
        fs = c.flag_stride
        cstride = max(128, 16 * fs)
        a(f"v_add_u32 v245, 4096, v10")
        Lp0, Ljoin = a.newlabel("L_poller"), a.newlabel("L_join")
        a(f"s_cmp_eq_u32 s{sWM}, 0"); a(f"s_cbranch_scc1 {Lp0}")
        Ld = a.newlabel("L_pre")
        for wm in range(1, 4):
            Ln = a.newlabel("L_pre")
            if wm < 3: a(f"s_cmp_lg_u32 s{sWM}, {wm}"); a(f"s_cbranch_scc1 {Ln}")
            for k in range(2): a(f"v_cndmask_b32 v{vPre+k}, v{EX+2*(2*wm-1)+k}, v{EX+2*(2*wm)+k}, vcc")
            if wm < 3: a(f"s_branch {Ld}"); a.label(Ln)
        a.label(Ld)
        def cdma(u, q, dw=0, dcol=0):
            t = [f"s_add_u32 m0, s{sWL}, {RING + u * 32768 + q * 1024 - 4096 * dw - 16384 * dcol}"]
            t.append(f"s_add_u32 s{sQ+2}, s{sCQ+q}, s{sCOLB+2*u if dcol else sOWN+u}")
            if dw: t.append(f"s_sub_u32 s{sQ+2}, s{sQ+2}, {1152*dw}")
            t.append(f"buffer_load_dwordx4 v{vCo_ if q & 1 else vCe}, s[{sCD}:{sCD+3}], s{sQ+2} offen lds")
            return t
        rec = Rec(); common(rec)
        def mixed(dmas):
            step = max(1, len(rec.l) // (len(dmas) + 1)); k = 0
            for n_, t in enumerate(rec.l):
                if n_ % step == 0 and k < len(dmas) and not t.startswith("s_"):
                    for x in dmas[k]: a(x)
                    k += 1
                a(t)
            for d_ in dmas[k:]:
                for x in d_: a(x)
        own = [cdma(u, q) for u in c.win1 for q in range(4)]
        Lc1 = a.newlabel("L_c1")
        a(f"s_cmp_eq_u32 s{sWM}, 1"); a(f"s_cbranch_scc1 {Lc1}")
        mixed(own)
        a(f"s_branch {Ljoin}")
        a.label(Lc1)
        mixed(own + [cdma(u, q, dw=1) for u in c.win1 for q in range(4)])
        a(f"s_branch {Ljoin}")
        a.label(Lp0)
        for k in range(2): a(f"v_cndmask_b32 v{vPre+k}, 0, v{EX+k}, vcc")
        aggloads()
        common()
        Lp, Lg = a.newlabel("L_aggpoll"), a.newlabel("L_aggok")
        a(f"s_mov_b32 s{sCNT}, {c.spin_max}")
        a.label(Lp)
        a("s_waitcnt vmcnt(0)")
        a(f"v_xor_b32 v2, s{sTAG}, v{G+1}")
        for m in range(8):
            for k in (1, 3):
                if m == 0 and k == 1: continue
                a(f"v_bitop3_b32 v2, v2, v{G+4*m+k}, s{sTAG} bitop3:0xf6")
        if c.samexcd: a(f"v_bitop3_b32 v2, v2, v251, s{sTAG} bitop3:0xf6")
        a("v_cmp_ne_u32 vcc, 0, v2")
        a(f"s_cbranch_vccz {Lg}")
        a(f"s_sub_u32 s{sCNT}, s{sCNT}, 1"); a(f"s_cbranch_scc1 {Lg}")
        aggloads()
        a(f"s_branch {Lp}")
        a.label(Lg)
        for m in range(8):
            acc_ = 12 + 2 * (m & 1); g_ = G + 4 * m; w_ = vr(W_ + 2 * m, 2)
            if m < 2: a(f"v_pk_mul_f32 {vr(acc_,2)}, {vr(g_,2)}, {w_} op_sel:[0,0] op_sel_hi:[0,1]")
            else: a(f"v_pk_fma_f32 {vr(acc_,2)}, {vr(g_,2)}, {w_}, {vr(acc_,2)} op_sel:[0,0,0] op_sel_hi:[0,1,1]")
            a(f"v_pk_fma_f32 {vr(acc_,2)}, {vr(g_+2,2)}, {w_}, {vr(acc_,2)} op_sel:[0,1,0] op_sel_hi:[0,0,1] neg_lo:[0,1,0]")
        a("v_pk_add_f32 v[12:13], v[12:13], v[14:15]")
        a("v_pk_mov_b32 v[14:15], v[12:13], v[12:13] op_sel:[0,1]")
        a("v_permlane32_swap_b32 v12, v14"); a("v_permlane32_swap_b32 v13, v15")
        a("v_pk_add_f32 v[12:13], v[12:13], v[14:15]")
        a("ds_write_b64 v245, v[12:13]")
        if c.samexcd:
            a(f"v_cmp_ne_u32 vcc, s{sXCC}, v250")
            a("s_cmp_lg_u64 vcc, 0"); a("s_cselect_b32 s70, 1, 0"); a("v_mov_b32 v14, s70")
            a(f"v_mov_b32 v2, {EXCH+4096+512}"); a("ds_write_b32 v2, v14")
        a("s_waitcnt lgkmcnt(0)")
        a.label(Ljoin)
        a.vm_reset()
        if c.jstamp: self.stamp(1)
        a("s_barrier")
        self.stamp(5)
        a("ds_read_b64 v[12:13], v245")
        if c.samexcd:
            a(f"v_mov_b32 v2, {EXCH+4096+512}"); a("ds_read_b32 v14, v2")
        a("s_waitcnt lgkmcnt(0)")
        cfma(a, vPre, 12, vL16h)
        if c.samexcd:
            a("v_readfirstlane_b32 s70, v14"); a("s_mov_b32 s71, 0")
        for r in range(0, 16, 2):
            R2, I2, QR, QI, CA = vr(R_+r,2), vr(I_+r,2), vr(Qr+r,2), vr(Qi+r,2), vr(vPre,2)
            a(f"v_pk_fma_f32 {R2}, {QR}, {CA}, {R2} op_sel:[0,0,0] op_sel_hi:[1,0,1]")
            a(f"v_pk_fma_f32 {I2}, {QR}, {CA}, {I2} op_sel:[0,1,0] op_sel_hi:[1,1,1]")
            a(f"v_pk_fma_f32 {R2}, {QI}, {CA}, {R2} op_sel:[0,1,0] op_sel_hi:[1,1,1] neg_lo:[0,1,0] neg_hi:[0,1,0]")
            a(f"v_pk_fma_f32 {I2}, {QI}, {CA}, {I2} op_sel:[0,0,0] op_sel_hi:[1,0,1]")
            a(f"v_cvt_pk_bf16_f32 v{FR+r//2}, v{R_+r}, v{R_+r+1}"); a(f"v_cvt_pk_bf16_f32 v{FR+8+r//2}, -v{I_+r}, -v{I_+r+1}")
            if r in (6, 14):
                ad = vTW if r == 6 else vTW2
                a(f"ds_write_b128 v{ad}, {vr(FR+(r//8)*4,4)}"); a(f"ds_write_b128 v{ad}, {vr(FR+8+(r//8)*4,4)} offset:2048")
        for k in range(4):
            a(f"ds_read_b64_tr_b16 {vr(128+4*k,2)}, v{vTR} offset:{512*k}"); a(f"ds_read_b64_tr_b16 {vr(128+4*k+2,2)}, v{vTR2} offset:{512*k+256}")
        for k in range(4):
            a(f"s_waitcnt lgkmcnt({6-2*k})")
            a(f"buffer_store_dwordx4 {vr(128+4*k,4)}, v4, s[{sWS}:{sWS+3}], s{sHB} offen offset:{1024*k}{c.hst_flags}")
        if c.jstamp: self.stamp(2)
        a("s_barrier")
        HR, NH, CFR, vC = 64, 36, 216, 16
        Lsu = a.newlabel("L_nosetup")
        a(f"s_cmp_lg_u32 s{sWN}, 0"); a(f"s_cbranch_scc1 {Lsu}")
        for k in range(4):
            a(f"ds_read_b64_tr_b16 {vr(144+4*k,2)}, v{vTR} offset:{16384+512*k}"); a(f"ds_read_b64_tr_b16 {vr(144+4*k+2,2)}, v{vTR2} offset:{16384+512*k+256}")
        for p in range(9): a(f"s_lshl_b32 s{sCOLB+p}, s{sCOLB+p}, 6"); a(f"s_add_u32 s{sCOLB+p}, s{sCOLB+p}, s58")
        a("v_lshrrev_b32 v2, 1, v7"); a("v_and_b32 v2, 7, v2"); a("v_lshlrev_b32 v2, 4, v2")
        a("v_lshl_add_u32 v2, v7, 7, v2"); a("v_lshl_add_u32 v2, v6, 13, v2"); a(f"v_add_u32 v2, {2*16384}, v2")
        for e in range(8): a(f"v_xor_b32 v{vC+e}, {16*e}, v2")
        a(f"s_lshl_b32 s{sT0}, s{sC}, 7"); a(f"s_lshl_b32 s{sT1}, s{sWM}, 5"); a(f"s_add_u32 s{sT0}, s{sT0}, s{sT1}"); a(f"s_mul_i32 s{sT0}, s{sT0}, 4608")
        a(f"s_lshl_b32 s{sT1}, s{sJ}, 8"); a(f"s_add_u32 s{sT0}, s{sT0}, s{sT1}"); a(f"s_add_u32 s{sT0}, s{sT0}, 2304")
        a("v_mul_u32_u24 v2, 18432, v6"); a("v_lshl_add_u32 v9, v7, 3, v2")
        if c.dualflag:
            a("v_min_u32 v2, 17, v7"); a("v_lshlrev_b32 v2, 2, v2"); a(f"v_mul_u32_u24 v3, {WS_XI-WS_FLG}, v6"); a("v_add_u32 v2, v2, v3")
        else:
            a("v_min_u32 v2, 17, v1"); a("v_lshlrev_b32 v2, 2, v2")
        a(f"s_mov_b32 s{sCNT}, {c.spin_max}")
        a(f"v_and_b32 v11, 0xffff0000, v{vP0+3}"); a(f"v_lshlrev_b32 v10, 16, v{vP0+3}")
        fl = lambda r: a(f"buffer_load_dword v{r}, v2, s[{sWS}:{sWS+3}], s{sFL} offen{c.fl_flags if r == 3 else c.fl_flags2}")
        for r in range(16):
            x = XR + r
            a(f"v_lshlrev_b32 v12, 16, v{x}"); a(f"v_and_b32 v13, 0xffff0000, v{x}")
            a("v_pk_mul_f32 v[12:13], v[12:13], v[10:11]")
            a(f"v_cvt_pk_bf16_f32 v{x}, v12, v13")
            a(f"v_lshlrev_b32 v{ACC2+r}, 16, v{x}"); a(f"v_and_b32 v{ACC2+16+r}, 0xffff0000, v{x}")
        a.label(Lsu)
        a("s_waitcnt vmcnt(0) lgkmcnt(0)")
        a("s_mov_b64 exec, 1")
        if c.dualflag:
            a(f"s_add_u32 s{sT1}, s{sFL}, {WS_XI-WS_FLG}")
            a(f"buffer_store_dword v253, v252, s[{sWS}:{sWS+3}], s{sT1} offen")
        a(f"buffer_store_dword v253, v252, s[{sWS}:{sWS+3}], s{sFL} offen sc1")
        a("s_mov_b64 exec, -1")
        a("s_barrier")
        self.stamp(6)
        Lw = a.newlabel("L_w")
        a(f"s_cmp_eq_u32 s{sWN}, 0"); a(f"s_cbranch_scc1 {Lw}")
        if c.w2delay: a(f"s_sleep {c.w2delay}")
        for u, dcols in ((3, (1, 0)), (4, (1,)), (0, (1, 0))):
            if u in c.win1 or u in c.cing1: continue
            for dcol in dcols:
                for q in range(4):
                    for x in cdma(u, q, dcol=dcol): a(x)
        a("s_waitcnt vmcnt(0)")
        a("s_barrier")
        if c.stamps: self.store_stamps(9, sWS)
        a("s_endpgm")
        a.label(Lw)
        HR, NH, CFR, vC = 64, 36, 216, 16
        order = list(range(16, 72)) + list(range(16))
        cbase = [2]
        def cread(n):
            ks = order[n]; cg, e = ks >> 3, ks & 7
            if e == 0 and cg == 6:
                for k in range(8): a(f"v_add_u32 v{vC+k}, 0x10000, v{vC+k}")
                cbase[0] = 6
            if e == 0 and cg == 0:
                for k in range(8): a(f"v_subrev_u32 v{vC+k}, {6*16384}, v{vC+k}")
                cbase[0] = 0
            off = RING + (cg - cbase[0]) * 16384; d = CFR + 8 * (n % 3)
            a(f"ds_read_b128 {vr(d,4)}, v{vC+e} offset:{off}"); a(f"ds_read_b128 {vr(d+4,4)}, v{vC+e} offset:{off+4096}")
        RING_REGS = list(range(160, 208, 4)) + list(range(64, 128, 4))
        def mm(n, h):
            d = CFR + 8 * (n % 3)
            a(f"v_mfma_f32_32x32x16_bf16 {vr(ACC2,16)}, {vr(h,4)}, {vr(d,4)}, {vr(ACC2,16)}")
            a(f"v_mfma_f32_32x32x16_bf16 {vr(ACC2+16,16)}, {vr(h,4)}, {vr(d+4,4)}, {vr(ACC2+16,16)}")
        cread(0); cread(1)
        for n in range(8):
            if n == 5: fl(3)
            cread(n + 2)
            a("s_waitcnt lgkmcnt(4)")
            mm(n, 128 + 4 * n)
        def pollcode(need):
            Lp, Lg = a.newlabel("L_flpoll"), a.newlabel("L_flok")
            a.label(Lp)
            for r0, r1 in ((3, 5), (5, 3)):
                fl(r1)
                a("s_waitcnt vmcnt(1)")
                a(f"v_cmp_eq_u32 s[70:71], s{sTAG}, v{r0}")
                if c.dualflag: a("s_or_b32 s70, s70, s71")
                a(f"s_andn2_b32 s{sT1}, {need}, s70")
                a(f"s_cbranch_scc0 {Lg}")
                if c.fl_sleep: a(f"s_sleep {c.fl_sleep}")
            a(f"s_sub_u32 s{sCNT}, s{sCNT}, 1"); a(f"s_cbranch_scc0 {Lp}")
            a.label(Lg)
        bit = lambda ks: 1 << (ks >> 2)
        first = (c.g2lead + 3) // 4
        pollcode(sum(bit(order[4 * g]) for g in range(first)) if c.g2check else 0x3ffff)
        self.stamp(7)
        a.vm_reset()
        assert not c.samexcd
        slow = []
        def hreg(n): return RING_REGS[(n - 8) % len(RING_REGS)]
        def hload(n):
            ks = order[n]
            if ks % 8 == 4: a(f"s_add_u32 s59, s{sCOLB + (ks >> 3)}, 4096")
            so = sCOLB + (ks >> 3) if ks % 8 < 4 else 59
            a.vmem(f"buffer_load_dwordx4 {vr(hreg(n),4)}, v4, s[{sWS}:{sWS+3}], s{so} offen offset:{1024*(ks%4)}{c.hload_flags}", f"h{n}")
        LEAD = c.g2lead
        for n in range(8, 8 + LEAD): hload(n)
        TL = 0
        def ostore(dt, r):
            row = (r & 3) + 8 * (r >> 2)
            a(f"s_add_u32 s{sT1}, s{sT0}, {row*4608}")
            if not c.skip_b_store: a(f"buffer_store_dword v{ACC2+16*dt+r}, v9, s[{sOS}:{sOS+3}], s{sT1} offen offset:{128*dt}{c.out_flags_b}")
        for n in range(8, 72):
            if n + 2 == max(10, 16 * len(set(c.win1) | set(c.cing1))): a("s_barrier")
            if n + 2 < 72: cread(n + 2)
            a.wait_vm(f"h{n}", extra=f" lgkmcnt({min(4, 2*(71-n))})")
            mm(n, hreg(n))
            if n + LEAD < 72: hload(n + LEAD)
        self.stamp(8)
        for r in range(16):
            row = (r & 3) + 8 * (r >> 2)
            a(f"v_mov_b32 v{64+2*r}, v{ACC2+r}"); a(f"v_mov_b32 v{65+2*r}, v{ACC2+16+r}")
            a(f"s_add_u32 s{sT1}, s{sT0}, {row*4608}")
            if not c.skip_b_store: a(f"buffer_store_dwordx2 {vr(64+2*r,2)}, v9, s[{sOS}:{sOS+3}], s{sT1} offen{c.out_flags_b}")
        if c.stamps:
            if c.endwait: a("s_waitcnt vmcnt(0)"); self.stamp(1)
            self.store_stamps(9, sWS)
        self.lag(c.lag_b)
        self.span_end(2, [2, 3, 4, 5, 6, 7])
        if c.hold_ns:
            a("s_cmp_lg_u32 s2, 0"); a("s_cbranch_scc1 L_exit")
            a.label("L_hold")
            a("s_memrealtime s[98:99]"); a("s_waitcnt lgkmcnt(0)")
            a("s_sub_u32 s98, s98, s100"); a(f"s_cmp_lt_u32 s98, {c.hold_ns//10}"); a("s_cbranch_scc1 L_hold")
        a("s_endpgm")
        for Ls, Lb, ks in slow:
            a.label(Ls)
            fl(3)
            pollcode(bit(ks))
            a("s_waitcnt vmcnt(0)")
            a(f"s_branch {Lb}")

    def roleA(self):
        a, c = self.a, self.c
        a.vm = [("pf", False)] if c.prefetch else []
        self.inB = False
        PS = 1312
        UB = 0
        UP1, UP2 = 1280, 2624
        ST = 31488
        SW = 16048
        PLO, OLO = (274 * 4, 548 * 4), 4 * 274 * 4
        PHI, OHI, HIOFF, KOFF = PLO, -3 * 274 * 4, 7672 + 3 * 274 * 4, 11888
        def ypl(it, r): return (HIOFF if it >= 2 else 0) + 4 * 136 * (it & 1) + (r & 1) * PLO[0] + (r >> 1) * PLO[1]
        def opl(it, r): return ypl(it, r) + (OHI if it >= 2 else OLO)
        YBASE = [ST + ch * SW for ch in range(4)] + [ST + 4 * SW + k * 2 * SW + 8256 for k in range(2)]
        assert ST + 8 * SW <= LDS_TOTAL
        sD0, sCH, sUS, sOS, sWS = 8, 9, 60, 64, 80
        sT0, sT1, sPASS, sE = 14, 15, 12, 13
        sMID, sLN, sLN2, sODD, sNA, sG = 10, 11, 72, 73, 78, 36
        self.sODD, self.sNA = sODD, sNA
        sKB, sYB, sXW, sXR = 68, 69, 70, 71
        U0 = [224 + 4 * j for j in range(8)]
        P = 20; vDT = 26; vDS = 28
        a.label("L_roleA")
        a("s_sub_u32 s5, s5, s8"); a(f"s_mov_b32 s{sODD}, s9")
        a(f"s_mul_i32 s{sNA}, s9, 3"); a(f"s_add_u32 s{sNA}, s{sNA}, 12"); a(f"s_cmp_ge_u32 s5, s{sNA}"); a("s_cbranch_scc1 L_exit")
        a(f"s_mov_b32 s{sT0}, s5"); a(f"s_lshl_b32 s{sE}, s{sT0}, 3"); a(f"s_add_u32 s{sE}, s{sE}, s3")
        a(f"s_lshr_b32 s{sT1}, s4, 1"); a(f"s_mul_i32 s{sT1}, s{sT1}, 27"); a("s_mul_i32 s59, s9, 12"); a(f"s_add_u32 s{sT1}, s{sT1}, s59")
        a(f"s_mul_i32 s59, s{sT1}, 43"); a("s_lshr_b32 s59, s59, 9"); a(f"s_mov_b32 s{sLN}, s59")
        a(f"s_add_u32 s59, s{sT1}, s{sNA}"); a("s_sub_u32 s59, s59, 1"); a("s_mul_i32 s59, s59, 43"); a(f"s_lshr_b32 s{sLN2}, s59, 9")
        a(f"s_add_u32 s{sT0}, s{sT0}, s{sT1}")
        a(f"s_mov_b32 s{sG}, s{sT0}")
        a(f"s_mul_i32 s{sT1}, s{sT0}, 171"); a(f"s_lshr_b32 s{sT1}, s{sT1}, 9"); a(f"s_mul_i32 s59, s{sT1}, 3"); a(f"s_sub_u32 s{sMID}, s{sT0}, s59")
        a(f"s_lshl_b32 s{sD0}, s{sT1}, 4"); a(f"s_mul_i32 s{sT0}, s{sMID}, 6"); a(f"s_min_u32 s{sT0}, s{sT0}, 10"); a(f"s_add_u32 s{sD0}, s{sD0}, s{sT0}")
        a(f"s_lshr_b32 s{sT0}, s3, 1"); a(f"s_add_u32 s{sT0}, s{sT0}, 2"); a("s_cmp_lt_u32 s3, 4"); a(f"s_cselect_b32 s{sCH}, s3, s{sT0}")
        a(f"s_cselect_b32 s{sPASS}, 2, 1")
        a(f"s_add_u32 s{sT0}, s{sD0}, s{sCH}")
        a(f"s_lshl_b32 s{sT1}, s{sT0}, 8"); a(f"v_lshl_add_u32 v2, v1, 2, s{sT1}")
        a(f"s_lshl_b32 s{sT1}, s{sT0}, 1"); a(f"v_mov_b32 v3, s{sT1}")
        a(f"s_lshl_b32 s{sT1}, s{sD0}, 1"); a(f"v_mov_b32 v35, s{sT1}")
        a("s_waitcnt lgkmcnt(0)")
        for k, p in enumerate((pAre, pAim, pABre, pABim, pACre, pACim)):
            a.vmem(f"global_load_dword v{P+k}, v2, {sp(p)}", "par")
        a.vmem(f"global_load_ushort v{vDT}, v3, {sp(pAdt)}", "par")
        a.vmem(f"global_load_dwordx3 {vr(vDS,3)}, v35, {sp(pAD)}", "par")
        srd(a, sUS, pAu, XSZ); srd(a, sOS, pOut, OUTSZ); srd(a, sWS, pWs, WS_SIZE)
        def pf_u():
            a("v_mul_u32_u24 v2, 1152, v1")
            a(f"s_and_b32 s{sT0}, s{sE}, 31"); a(f"s_mul_i32 s{sT0}, s{sT0}, {64*1152}")
            a(f"s_lshr_b32 s{sT1}, s{sE}, 5"); a(f"s_add_u32 s{sT1}, s{sT1}, s{sLN}"); a(f"s_cmp_gt_u32 s{sT1}, s{sLN2}"); a(f"s_cselect_b32 s{sT0}, {XSZ}, s{sT0}")
            a(f"s_lshl_b32 s{sT1}, s{sT1}, 7"); a(f"s_add_u32 s{sT0}, s{sT0}, s{sT1}")
            a.vmem(f"buffer_load_dword v250, v2, s[{sUS}:{sUS+3}], s{sT0} offen", "pf3")
        def pf_c():
            Lc_ = a.newlabel("L_nopfc")
            a(f"s_cmp_ge_u32 s{sE}, 81"); a(f"s_cbranch_scc1 {Lc_}")
            a("v_lshlrev_b32 v2, 7, v1"); a(f"s_lshl_b32 s{sT0}, s{sE}, 13"); a(f"v_add_u32 v2, s{sT0}, v2")
            a.vmem(f"global_load_dword v249, v2, {sp(pCre)}", "pf3", optional=True)
            a.vmem(f"global_load_dword v248, v2, {sp(pCim)}", "pf3", optional=True)
            a.label(Lc_)
            if c.pretouch:
                Lt_ = a.newlabel("L_nopt")
                a(f"s_cmp_ge_u32 s{sE}, 72"); a(f"s_cbranch_scc1 {Lt_}")
                a("v_lshlrev_b32 v2, 7, v1"); a(f"s_lshl_b32 s{sT0}, s{sE}, 13"); a(f"s_mul_i32 s{sT1}, s4, {8*72*1024}"); a(f"s_add_u32 s{sT0}, s{sT0}, s{sT1}"); a(f"s_add_u32 s{sT0}, s{sT0}, {WS_H}")
                a.vmem(f"buffer_load_dword v247, v2, s[{sWS}:{sWS+3}], s{sT0} offen", "pf3", optional=True)
                a.label(Lt_)
        def pf_m():
            Lm = a.newlabel("L_nopfm")
            a(f"s_cmp_lg_u32 s{sMID}, 1"); a(f"s_cbranch_scc1 {Lm}")
            ns = 9 - c.m_s0
            for k in range((22 * ns + 31) // 32):
                def idx(t0, k=k):
                    a(f"s_sub_u32 s{t0}, s5, 18"); a(f"s_mul_i32 s{t0}, s{t0}, 171"); a(f"s_lshr_b32 s{t0}, s{t0}, 9"); a(f"s_min_u32 s{t0}, s{t0}, 3")
                    a(f"s_lshl2_add_u32 s{t0}, s3, s{t0}"); a(f"s_add_u32 s{t0}, s{t0}, {32*k}")
                self.pf_s(c.m_s0, ns, sT0, sT1, 2, 240 + k, idx=idx, optional=True)
            a.label(Lm)
        def pf_c2(k):
            a(f"s_lshl2_add_u32 s{sT0}, s5, s3")
            if k: a(f"s_lshl2_add_u32 s{sT0}, s{sNA}, s{sT0}")
            a(f"s_cmp_eq_u32 s{sODD}, 0"); a("s_movk_i32 s59, 6554"); a("s_cselect_b32 s59, s59, 0x2000"); a("s_cselect_b32 s79, 10, 8")
            a(f"s_mul_i32 s{sT1}, s{sT0}, s59"); a(f"s_lshr_b32 s{sT1}, s{sT1}, 16")
            a(f"s_mul_i32 s59, s{sT1}, s79"); a(f"s_sub_u32 s{sT0}, s{sT0}, s59")
            a(f"s_min_u32 s{sT1}, s{sT1}, 8"); a(f"s_add_u32 s{sT1}, s{sT1}, 2"); a(f"s_sub_u32 s59, s{sT1}, 9"); a(f"s_min_u32 s{sT1}, s{sT1}, s59"); a(f"s_lshl_b32 s{sT1}, s{sT1}, 7")
            a(f"s_bitcmp1_b32 s{sT0}, 0"); a(f"s_cselect_b32 s6, s{pCim}, s{pCre}"); a(f"s_cselect_b32 s7, s{pCim+1}, s{pCre+1}")
            a(f"s_lshr_b32 s{sT0}, s{sT0}, 1"); a(f"s_mul_i32 s59, s{sODD}, 5"); a(f"s_add_u32 s{sT0}, s{sT0}, s59")
            a(f"s_mul_i32 s{sT0}, s{sT0}, {64*1152}"); a(f"s_add_u32 s{sT0}, s{sT0}, s{sT1}")
            a("v_mul_u32_u24 v2, 1152, v1"); a(f"v_add_u32 v2, s{sT0}, v2")
            a(f"global_load_dword v{4+k}, v2, s[6:7]")
        def touch_small():
            a(f"s_lshl_b32 s{sT0}, s{sG}, 13"); a(f"s_add_u32 s{sT0}, s{sT0}, {WS_AGG}")
            a(f"s_cmp_eq_u32 s{sG}, 18"); a(f"s_cselect_b32 s{sT0}, {WS_FLG}, s{sT0}")
            a(f"s_cmp_gt_u32 s{sG}, 18"); a(f"s_cselect_b32 s{sT0}, {WS_SIZE}, s{sT0}")
            a("s_cmp_lg_u32 s3, 7"); a(f"s_cselect_b32 s{sT0}, {WS_SIZE}, s{sT0}")
            a("v_lshlrev_b32 v2, 7, v1")
            a.vmem(f"buffer_load_dword v243, v2, s[{sWS}:{sWS+3}], s{sT0} offen", "pf3")
        def touch_h(vd, w0=4):
            a(f"s_lshl2_add_u32 s{sT0}, s{sG}, s3"); a(f"s_sub_u32 s{sT0}, s{sT0}, {w0}"); a(f"s_lshl_b32 s{sT0}, s{sT0}, 13"); a(f"s_add_u32 s{sT0}, s{sT0}, {WS_H}")
            a("v_lshlrev_b32 v2, 7, v1")
            a(f"buffer_load_dword v{vd}, v2, s[{sWS}:{sWS+3}], s{sT0} offen{c.touch_fl}")
            a(f"s_add_u32 s{sT0}, s{sT0}, {432*8192}"); a(f"s_cmp_ge_u32 s{sT0}, {WS_H+576*8192}"); a(f"s_cselect_b32 s{sT0}, {WS_SIZE}, s{sT0}")
            a(f"buffer_load_dword v{vd+1}, v2, s[{sWS}:{sWS+3}], s{sT0} offen{c.touch_fl}")
        def touch_m():
            Lm = a.newlabel("L_notm")
            a(f"s_cmp_lg_u32 s{sMID}, 1"); a(f"s_cbranch_scc1 {Lm}")
            a(f"s_mul_i32 s{sT0}, s5, 171"); a(f"s_lshr_b32 s{sT0}, s{sT0}, 9"); a(f"s_lshl3_add_u32 s{sT0}, s{sT0}, s3")
            a("v_lshlrev_b32 v2, 7, v1")
            for r in range(3):
                if r: a(f"s_lshl3_add_u32 s{sT0}, s{sODD}, s{sT0}"); a(f"s_add_u32 s{sT0}, s{sT0}, 32")
                a(f"s_and_b32 s{sT1}, s{sT0}, 15"); a("s_and_b32 s59, s4, 6"); a(f"s_lshl3_add_u32 s{sT1}, s59, s{sT1}"); a(f"s_mul_i32 s{sT1}, s{sT1}, {72*1024}")
                a(f"s_lshr_b32 s59, s{sT0}, 4"); a(f"s_add_u32 s79, s59, s{sODD}"); a(f"s_cmp_ge_u32 s79, 5"); a(f"s_cselect_b32 s{sT1}, {WS_SIZE}, s{sT1}")
                a(f"s_mul_i32 s79, s{sODD}, 5"); a("s_add_u32 s59, s59, s79"); a("s_lshl_b32 s59, s59, 13"); a(f"s_add_u32 s{sT1}, s{sT1}, s59"); a(f"s_add_u32 s{sT1}, s{sT1}, {WS_H}")
                a.vmem(f"buffer_load_dword v{240+r}, v2, s[{sWS}:{sWS+3}], s{sT1} offen{c.touch_fl}", "pf3", optional=True)
            a.label(Lm)
        if c.touch_small: touch_small()
        PFS = {"u": pf_u, "m": pf_m, "h": touch_m, "b": lambda: self.pf_b(sE, sT0, sT1, 2, 251), "c": pf_c,
               "s": lambda: self.pf_s(2, 3, sT0, sT1, 2, 251), "t": lambda: self.pf_s(5, 4, sT0, sT1, 2, 244)}
        if c.tlbwarm:
            a("v_lshlrev_b32 v2, 20, v1")
            a.vmem(f"buffer_load_dword v246, v2, s[{sWS}:{sWS+3}], 0 offen", "pf3")
            a.vmem(f"buffer_load_dword v245, v2, s[{sOS}:{sOS+3}], 0 offen", "pf3")
        for what in c.pf_early:
            PFS[what]()
        self.stamp(1)
        if c.a_exit: a("s_endpgm")
        a("v_and_b32 v31, 255, v0"); a("v_lshrrev_b32 v31, 2, v31"); a("v_and_b32 v32, 3, v0"); a("v_lshl_add_u32 v33, v31, 5, v32")
        a("v_mul_u32_u24 v34, 1152, v33"); a("v_add_u32 v34, v35, v34")
        a("v_lshrrev_b32 v36, 6, v0"); a(f"v_mul_u32_u24 v36, {4*PS}, v36"); a("v_and_b32 v37, 15, v0"); a("v_lshl_add_u32 v36, v37, 4, v36")
        a("v_bfe_u32 v37, v0, 4, 1"); a(f"v_mul_u32_u24 v37, {UP1}, v37"); a("v_add_u32 v36, v36, v37")
        a("v_bfe_u32 v37, v0, 5, 1"); a(f"v_mul_u32_u24 v37, {UP2}, v37"); a("v_add_u32 v36, v36, v37")
        for k in range(4): a(f"v_mov_b32 v{40+k}, 0")
        Lz = a.newlabel("L_noz")
        a("s_cmp_ge_u32 s3, 6"); a(f"s_cbranch_scc1 {Lz}")
        a(f"ds_write_b128 v36, v[40:43] offset:{UB}")
        a.label(Lz)
        a(f"s_mul_i32 s{sT0}, s3, {SW}"); a(f"s_add_u32 s58, s{sT0}, {ST}")
        a(f"s_add_u32 s{sKB}, s58, {KOFF}"); a(f"s_mov_b32 s{sYB}, s58")
        a(f"s_add_u32 s{sXW}, s58, 4160"); a(f"s_add_u32 s{sXR}, s58, 23680")
        Lb = a.newlabel("L_bases")
        a("s_cmp_lt_u32 s3, 4"); a(f"s_cbranch_scc1 {Lb}")
        a(f"s_add_u32 s{sYB}, s58, 8256"); a(f"s_mov_b32 s{sKB}, s58")
        a("s_bitcmp0_b32 s3, 0"); a(f"s_cbranch_scc1 {Lb}")
        a(f"s_add_u32 s{sKB}, s58, {27936-SW}"); a(f"s_sub_u32 s{sYB}, s58, {SW-8256}")
        a(f"s_add_u32 s{sXW}, s58, {23680-SW}"); a(f"s_sub_u32 s{sXR}, s58, {SW-4160}")
        a.label(Lb)
        a("v_lshlrev_b32 v36, 2, v1"); a("v_add_u32 v36, s58, v36")
        a("v_and_b32 v7, 31, v1"); a("v_lshrrev_b32 v3, 5, v1")
        a("v_mul_u32_u24 v37, 272, v7"); a("v_lshl_add_u32 v37, v3, 4, v37"); a("v_add_u32 v37, s58, v37")
        a(f"s_lshl_b32 s{sT0}, s3, 2"); a(f"s_add_u32 s{sT0}, s{sT0}, {ST+8*SW}"); a(f"v_mov_b32 v2, s{sT0}"); a("ds_write_b32 v2, v40")
        F = 64
        for k in range(16): a(f"v_mov_b32 v{F+k}, 0")
        a.wait_vm("par")
        self.stamp(2)
        if c.touch_h == "par":
            Lth = a.newlabel("L_noth")
            a("s_cmp_ge_u32 s3, 4"); a(f"s_cbranch_scc1 {Lth}")
            touch_h(4, 0)
            a.label(Lth)
        for what in c.pf_late:
            PFS[what]()
        a(f"v_lshlrev_b32 v{vDT}, 16, v{vDT}"); a(f"v_mul_f32 v{vDT}, {LOG2E}, v{vDT}"); a(f"v_exp_f32 v{vDT}, v{vDT}")
        a(f"v_cvt_pk_bf16_f32 v{vDT}, v{vDT}, v{vDT}"); a(f"v_lshlrev_b32 v{vDT}, 16, v{vDT}")
        Lh = a.newlabel("L_lo")
        a("s_cmp_lt_u32 s3, 4"); a(f"s_cbranch_scc1 {Lh}")
        a("s_bitcmp0_b32 s3, 0"); a(f"s_cbranch_scc1 {Lh}")
        for k in range(6): a(f"v_lshrrev_b32 v{P+k}, 16, v{P+k}")
        a.label(Lh)
        if c.mid_skip:
            Lms = a.newlabel("L_dopass")
            a("s_cmp_lt_u32 s3, 4"); a(f"s_cbranch_scc1 {Lms}")
            a(f"s_cmp_lg_u32 s{sMID}, 1"); a(f"s_cbranch_scc1 {Lms}")
            for j in range(8):
                a(f"s_mov_b32 s{sT1}, {4608*j}")
                a(f"buffer_load_dwordx3 {vr(U0[j],3)}, v34, s[{sUS}:{sUS+3}], s{sT1} offen")
            a("s_branch L_passdone")
            a.label(Lms)
        E1, E8, E256, V = 40, 42, 44, 96
        T = 46
        a.label("L_pass")
        for k in range(6): a(f"v_lshlrev_b32 v{T+k}, 16, v{P+k}")
        for k in range(6): a(f"v_lshrrev_b32 v{P+k}, 16, v{P+k}")
        a(f"v_mul_f32 v{T}, v{vDT}, v{T}"); a(f"v_mul_f32 v{T+1}, v{vDT}, v{T+1}")
        a(f"v_mul_f32 v{T}, {LOG2E}, v{T}"); a(f"v_mul_f32 v{T+1}, {INV2PI}, v{T+1}")
        cexp(a, E8, T, T + 1, f2u(8.0), T + 8, T + 9)
        cexp(a, E1, T, T + 1, None, T + 6, T + 7)
        cexp(a, E256, T, T + 1, f2u(256.0), T + 8, T + 9)
        cmul(a, T + 6, T + 4, T + 2)
        a(f"v_mul_f32 v{V}, v{vDT}, v{T+6}"); a(f"v_mul_f32 v{V+1}, v{vDT}, v{T+7}")
        rows = {}
        h0 = [0,1,2,3,4,5,6,7, 256,258,260,262,264, 1024,1032]
        h1 = [512,516,520, 768,772,776, 1280,1288, 1536,1544, 1792,1800]
        for r, o in enumerate(h0): rows[o] = (r & 3) + 8 * (r >> 2)
        for r, o in enumerate(h1): rows[o] = (r & 3) + 8 * (r >> 2) + 4
        assert sorted(rows.values()) == list(range(27))
        plan = [(j, j - 1, E1) for j in range(1, 9)]
        for q in range(1, 8): plan.append((256 * q, 256 * (q - 1), E256))
        for q in range(1, 8): plan.append((256 * q + 8, 256 * (q - 1) + 8, E256))
        plan += [(258, 2, E256), (260, 4, E256), (262, 6, E256), (516, 260, E256), (772, 516, E256)]
        reg = {0: V}
        for n_, (o, s_, m_) in enumerate(plan): reg[o] = V + 2 + 2 * n_
        tmpc = [60, 61, 62, 63]
        cnt = [0]
        def xrow(o):
            a(f"v_cvt_pk_bf16_f32 v{tmpc[cnt[0]%4]}, v{reg[o]}, -v{reg[o]+1}")
            a(f"ds_write_b32 v36, v{tmpc[cnt[0]%4]} offset:{272*rows[o]}"); cnt[0] += 1
        def doX(n_):
            o, s_, m_ = plan[n_]
            cmul(a, reg[o], reg[s_], m_)
            if o in rows: xrow(o)
        YA, YBr = 56, 58
        def yrow(col, r_):
            a(f"v_cvt_pk_bf16_f32 v{tmpc[cnt[0]%4]}, v{r_}, v{r_+1}")
            a(f"ds_write_b32 v36, v{tmpc[cnt[0]%4]} offset:{272*(27+col)}"); cnt[0] += 1
        xrow(0)
        a(f"v_mov_b32 v{tmpc[cnt[0]%4]}, 0x3f80"); a(f"ds_write_b32 v36, v{tmpc[cnt[0]%4]} offset:{272*27}"); cnt[0] += 1
        yrow(1, E8)
        cur = E8; nxt = YA
        gpts = c.gather_pts
        for col in range(2, 32):
            cmul(a, nxt, cur, E8); yrow(col, nxt)
            cur = nxt; nxt = YBr if nxt == YA else YA
            if col - 2 < len(plan): doX(col - 2)
            if col in gpts:
                Lg_ = a.newlabel("L_nog")
                a("s_cmp_lt_u32 s3, 4"); a(f"s_cbranch_scc1 {Lg_}")
                k0 = gpts.index(col); n = 8 // len(gpts)
                for j in range(n * k0, n * k0 + n):
                    a(f"s_mov_b32 s{sT1}, {4608*j}")
                    a.vmem(f"buffer_load_dwordx3 {vr(U0[j],3)}, v34, s[{sUS}:{sUS+3}], s{sT1} offen", "u")
                a.label(Lg_)
        FA = 160
        for ks in range(8):
            a(f"ds_read_b128 {vr(FA+8*ks,4)}, v37 offset:{32*ks}")
            a(f"ds_read_b128 {vr(FA+8*ks+4,4)}, v37 offset:{27*272+32*ks}")
        for ks in range(8):
            a(f"s_waitcnt lgkmcnt({14-2*ks})")
            a(f"v_mfma_f32_32x32x16_bf16 {vr(F,16)}, {vr(FA+8*ks,4)}, {vr(FA+8*ks+4,4)}, {vr(F,16)}")
        if c.touch_h == "p1":
            Lth = a.newlabel("L_noth")
            a("s_cmp_ge_u32 s3, 4"); a(f"s_cbranch_scc1 {Lth}")
            a(f"s_cmp_lg_u32 s{sPASS}, 2"); a(f"s_cbranch_scc1 {Lth}")
            touch_h(4, 0)
            a.label(Lth)
        if "c" in c.pf_mid:
            Lc2 = a.newlabel("L_noc2")
            a("s_cmp_ge_u32 s3, 4"); a(f"s_cbranch_scc1 {Lc2}")
            a(f"s_cmp_lg_u32 s{sPASS}, {3 - c.pf_c_pass}"); a(f"s_cbranch_scc1 {Lc2}")
            pf_c2(0); pf_c2(1)
            a.label(Lc2)
        a(f"s_sub_u32 s{sPASS}, s{sPASS}, 1"); a(f"s_cmp_lg_u32 s{sPASS}, 0"); a("s_cbranch_scc1 L_pass")
        a.label("L_passdone")
        self.stamp(3)
        ACC, BF = 128, 96
        def acc(pp, it): return ACC + 32 * it + 16 * pp
        a("v_lshrrev_b32 v2, 5, v1"); a("v_lshlrev_b32 v2, 6, v2")
        a("v_bfe_u32 v3, v1, 2, 2"); a("v_lshl_add_u32 v2, v3, 3, v2")
        a("v_and_b32 v3, 3, v1"); a("v_lshlrev_b32 v3, 3, v3"); a("v_sub_u32 v2, v3, v2")
        a("v_bfe_u32 v3, v1, 4, 1"); a("v_lshl_add_u32 v2, v3, 5, v2")
        a(f"s_add_u32 s{sT0}, s{sKB}, 88"); a(f"v_add_u32 v40, s{sT0}, v2")
        a(f"v_mul_u32_u24 v41, {UP1}, v3"); a("v_and_b32 v2, 15, v1"); a("v_lshrrev_b32 v44, 5, v1"); a("v_add_u32 v42, v2, v44"); a("v_lshl_add_u32 v41, v42, 4, v41")
        a(f"s_mul_i32 s{sT0}, s{sCH}, {4*PS}"); a(f"s_add_u32 s{sT0}, s{sT0}, {UB}"); a(f"v_add_u32 v41, s{sT0}, v41")
        a("v_lshrrev_b32 v42, 2, v2"); a("v_lshlrev_b32 v42, 1, v42"); a("v_lshl_add_u32 v42, v2, 3, v42"); a("v_lshl_add_u32 v42, v3, 2, v42"); a("v_add_u32 v42, v42, v44"); a("v_lshlrev_b32 v42, 2, v42")
        a(f"v_add_u32 v42, s{sYB}, v42")
        a("v_and_b32 v43, 51, v1"); a("v_cmp_eq_u32 vcc, 51, v43"); a("v_mov_b32 v43, 4"); a("v_mov_b32 v44, 12")
        a("v_cndmask_b32 v43, v43, v44, vcc"); a("v_add_u32 v43, v43, v42")
        a("v_cmp_eq_u32 vcc, 63, v1"); a(f"v_mov_b32 v37, {HIOFF+OHI-OLO-4*272}"); a("v_cndmask_b32 v37, 0, v37, vcc"); a("v_add_u32 v37, v37, v43")
        a("v_lshlrev_b32 v39, 4, v1")
        Lf1 = a.newlabel("L_f1")
        a("s_cmp_lt_u32 s3, 4"); a(f"s_cbranch_scc1 {Lf1}")
        a(f"v_add_u32 v2, s{sXW}, v39")
        for k in range(4): a(f"ds_write_b128 v2, {vr(F+4*k,4)} offset:{1024*k}")
        a("s_mov_b32 s6, 0x05040100"); a("s_mov_b32 s7, 0x07060302")
        a("v_and_b32 v38, 1, v32"); a(f"v_mul_u32_u24 v38, {UP1}, v38"); a("v_lshl_add_u32 v38, v31, 4, v38")
        a("v_lshrrev_b32 v3, 1, v32"); a(f"v_mul_u32_u24 v3, {UP2}, v3"); a("v_add_u32 v38, v38, v3")
        a("s_waitcnt vmcnt(0)")
        if c.touch_h == "U": touch_h(4)
        for ch in range(6):
            sel = "s7" if ch & 1 else "s6"; m = ch >> 1; t = 96 + 4 * ch
            for k in range(4): a(f"v_perm_b32 v{t+k}, v{U0[2*k+1]+m}, v{U0[2*k]+m}, {sel}")
            a(f"ds_write_b128 v38, {vr(t,4)} offset:{UB+ch*4*PS+256}")
        a("s_waitcnt lgkmcnt(0)")
        a("s_barrier")
        if c.a_prio: a("s_setprio 1")
        if c.touch_h == "B1": touch_h(4)
        a(f"v_add_u32 v2, s{sXR}, v39")
        for k in range(4): a(f"ds_read_b128 {vr(96+4*k,4)}, v2 offset:{1024*k}")
        a("s_waitcnt lgkmcnt(0)")
        for k in range(15): a(f"v_add_f32 v{F+k}, v{F+k}, v{96+k}")
        a.label(Lf1)
        a(f"s_add_u32 s{sT0}, s{sKB}, 64")
        a(f"v_lshl_add_u32 v2, v7, 4, s{sT0}")
        a("v_and_b32 v3, 1, v1"); a("v_cmp_eq_u32 vcc, 1, v3")
        def blk(b, quad, tb):
            for k, (x, y) in enumerate(quad): a(f"v_cvt_pk_bf16_f32 v{tb+k}, v{x}, v{y}")
            a(f"ds_write_b128 v2, {vr(tb,4)} offset:{512*b}")
        def blk3(b, f0, f8, tb):
            a(f"v_cndmask_b32 v{tb+4}, v{f0}, v{f8}, vcc")
            blk(b, [(f0, f0), (f0, f0), (tb + 4, f8), (f8, f8)], tb)
        a("s_mov_b32 exec_hi, 0")
        blk(0, [(F, F+1), (F+2, F+3), (F+4, F+5), (F+6, F+7)], 96)
        blk(1, [(F+8, F+8), (F+9, F+10), (F+10, F+10), (F+11, F+12)], 104)
        blk3(4, F + 13, F + 14, 112)
        a("s_mov_b32 exec_hi, -1"); a("s_mov_b32 exec_lo, 0")
        blk(2, [(F, F), (F, F+1), (F+1, F+1), (F+2, F+2)], 96)
        blk(3, [(F+3, F+3), (F+3, F+4), (F+4, F+4), (F+5, F+5)], 104)
        blk3(5, F + 6, F + 7, 112); blk3(6, F + 8, F + 9, 120); blk3(7, F + 10, F + 11, 128)
        a("s_mov_b32 exec_hi, 15")
        for k in range(4): a(f"v_mov_b32 v{136+k}, 0")
        a("v_subrev_u32 v2, 64, v2")
        a("ds_write_b128 v2, v[136:139]")
        a("s_mov_b32 exec_hi, 1"); a(f"v_mov_b32 v2, s{sYB}")
        for r in range(3): a(f"ds_write_b32 v2, v136 offset:{opl(0,r)}")
        a("s_mov_b64 exec, -1")

        def conv(its, fill=None, after=None):
            fill = list(fill or [])
            nm = sum(16 * (it + 1) for it in its)
            rate = (len(fill) + 0.0) / max(1, int(nm * c.fill_frac)); credit = [0.0 - c.fill_skip * rate]
            def filler():
                credit[0] += rate
                while fill and credit[0] >= 1.0:
                    t = fill.pop(0); credit[0] -= 1.0
                    a(t)
                    if t.startswith("ds_"): lg.append(("w",))
                    if not fill and after: after(lg)
            AFB = [48, 64]
            qs = sorted({q for it in its for q in range(it + 1)})
            ms = sorted({it - q for it in its for q in range(it + 1)})
            seq = [(rho, pp, m) for rho in range(8) for pp in range(2) for m in ms]
            lg = []
            def bread(n_):
                rho, pp, m = seq[n_]
                if c.cv_nob: return
                a(f"ds_read_b128 {vr(BF+4*(n_%8),4)}, v41 offset:{pp*UP2+256+256*m-32*rho-16}"); lg.append(("b", n_))
            def aread(rho, q):
                if c.cv_noa: return
                for k in range(2):
                    a(f"ds_read_b64_tr_b16 {vr(AFB[rho&1]+4*q+2*k,2)}, v40 offset:{2*(64+64*(rho+8*q)-16*k)-88}"); lg.append(("a", rho, q))
            def waitfor(key):
                if key in lg:
                    idx = max(i for i, k_ in enumerate(lg) if k_ == key)
                    a(f"s_waitcnt lgkmcnt({min(len(lg) - 1 - idx, 15)})")
                    del lg[:idx + 1]
            PF = c.a_pf
            aread(0, qs[0]); bread(0)
            for q in qs[1:]: aread(0, q)
            for n_ in range(1, PF): bread(n_)
            used = set()
            per = len(ms) * 2
            for n_, (rho, pp, m) in enumerate(seq):
                if n_ + PF < len(seq): bread(n_ + PF)
                k_ = n_ - rho * per - 1
                if rho < 7 and 0 <= k_ < len(qs): aread(rho + 1, qs[k_])
                waitfor(("b", n_))
                for it in its:
                    q = it - m
                    if q < 0: continue
                    waitfor(("a", rho, q))
                    d = acc(pp, it); af = AFB[rho & 1] + 4 * q
                    if not c.cv_nomfma: a(f"v_mfma_f32_32x32x16_bf16 {vr(d,16)}, {vr(af,4)}, {vr(BF+4*(n_%8),4)}, {vr(d,16) if d in used else '0'}")
                    used.add(d)
                    filler()
            while fill: credit[0] += 1.0; filler()
        def combine(its, a=a):
            for it in its:
                Pq, Qq = acc(0, it), acc(1, it)
                for bb in range(2):
                    for base in (Pq, Qq):
                        for r in range(4): a(f"v_permlane16_swap_b32 v{base+4*bb+r}, v{base+8+4*bb+r}")
                    A0, A1, A2, A3 = Pq + 4 * bb, Pq + 8 + 4 * bb, Qq + 4 * bb, Qq + 8 + 4 * bb
                    a(f"v_add_f32 v{A0+2}, v{A0+2}, v{A2}"); a(f"v_add_f32 v{A0+3}, v{A0+3}, v{A2+1}")
                    a(f"v_add_f32 v{A0+1}, v{A0+1}, v{A1}")
                    a(f"v_add_f32 v{A1+3}, v{A1+3}, v{A2+2}"); a(f"v_add_f32 v{A2+3}, v{A2+3}, v{A3+2}")
                    a(f"v_add_f32 v{A0+2}, v{A0+2}, v{A1+1}"); a(f"v_add_f32 v{A0+3}, v{A0+3}, v{A1+2}")
                    a(f"v_add_f32 v{A1+3}, v{A1+3}, v{A3+1}"); a(f"v_add_f32 v{A0+3}, v{A0+3}, v{A3}")
                    o = 8 * bb
                    for r in range(4): a(f"ds_write_b32 v42, v{A0+r} offset:{ypl(it,r)+o}")
                    for r, src in enumerate((A1 + 3, A2 + 3, A3 + 3)):
                        if bb == 0: a(f"ds_write_b32 v42, v{src} offset:{opl(it,r)+o+4}")
                        else: a(f"ds_write_b32 v{37 if it == 1 else 43}, v{src} offset:{opl(it,r)+o}")
        def epilogue(R, row0, vtid):
            I0 = row0 // 4
            a(f"v_lshrrev_b32 v2, 2, v{vtid}"); a(f"v_and_b32 v3, 3, v{vtid}")
            if R > 1: a(f"v_lshlrev_b32 v2, {R.bit_length()-1}, v2")
            a("v_lshl_add_u32 v4, v2, 2, v3"); a("v_mul_u32_u24 v4, 4608, v4")
            a("v_and_b32 v6, 1, v3"); a("v_lshrrev_b32 v9, 1, v3")
            a(f"v_mul_u32_u24 v5, {UP1}, v6"); a("v_lshl_add_u32 v5, v2, 1, v5"); a(f"v_mul_u32_u24 v8, {UP2}, v9"); a("v_add_u32 v5, v5, v8")
            a("v_lshrrev_b32 v8, 5, v2"); a("v_lshl_add_u32 v2, v8, 1, v2"); a("v_lshlrev_b32 v2, 2, v2")
            hi = row0 >= 1024
            pl, ob = (PHI, OHI) if hi else (PLO, OLO)
            a(f"v_mul_u32_u24 v8, {pl[0]}, v6"); a("v_add_u32 v2, v2, v8")
            a(f"v_mul_u32_u24 v8, {pl[1]}, v9"); a("v_add_u32 v2, v2, v8")
            yo = HIOFF if hi else 4 * (I0 + 2 * (I0 >> 5))
            a(f"v_add_u32 v2, {ST+yo}, v2"); a(f"v_add_u32 v8, {ob & 0xffffffff}, v2")
            a("v_cmp_eq_u32 vcc, 3, v3"); a("v_cndmask_b32 v8, v8, v2, vcc")
            a("v_cndmask_b32 v9, 1.0, 0, vcc")
            a(f"v_add_u32 v10, {YBASE[4]-ST}, v2"); a(f"v_add_u32 v11, {YBASE[4]-ST}, v8")
            a("v_mov_b32 v12, v4"); a("v_mul_u32_u24 v14, 4596, v6"); a("v_sub_u32 v4, v4, v14")
            a("s_mov_b32 s74, 0x55555555"); a("s_mov_b32 s75, 0x55555555"); a("s_mov_b32 s76, 0xaaaaaaaa"); a("s_mov_b32 s77, 0xaaaaaaaa")
            a(f"s_lshl_b32 s{sT0}, s{sD0}, 2"); a(f"s_add_u32 s{sT0}, s{sT0}, {row0*4608}")
            Y, O, U, S = 64, 96, 128, 144
            def rd(dst, base, off):
                if R == 4: a(f"ds_read_b64 {vr(dst,2)}, v{base} offset:{off}"); a(f"ds_read_b64 {vr(dst+2,2)}, v{base} offset:{off+8}")
                elif R == 2: a(f"ds_read_b64 {vr(dst,2)}, v{base} offset:{off}")
                else: a(f"ds_read_b32 v{dst}, v{base} offset:{off}")
            for ch in range(6):
                uo = UB + ch * 4 * PS + 256 + 2 * I0
                if R == 4: a(f"ds_read_b64 {vr(U+2*ch,2)}, v5 offset:{uo}")
                elif R == 2: a(f"ds_read_b32 v{U+2*ch}, v5 offset:{uo}")
                else: a(f"ds_read_u16 v{U+2*ch}, v5 offset:{uo}")
            for ch in range(6):
                by, bo, off = (2, 8, YBASE[ch] - ST) if ch < 4 else (10, 11, YBASE[ch] - YBASE[4])
                rd(Y + 4 * ch, by, off); rd(O + 4 * ch, bo, off)
            DS = 46
            for ch in range(6):
                if ch & 1: a(f"v_and_b32 v{DS+ch}, 0xffff0000, v{vDS+ch//2}")
                else: a(f"v_lshlrev_b32 v{DS+ch}, 16, v{vDS+ch//2}")
            nrd = 12 * (2 if R == 4 else 1)
            a(f"s_waitcnt lgkmcnt({min(nrd, 15)})")
            if nrd > 15: pass
            for j in range(R):
                for ch in range(6):
                    d = S + 8 * j + ch; u = U + 2 * ch + (j >> 1)
                    if j & 1: a(f"v_and_b32 v{d}, 0xffff0000, v{u}")
                    else: a(f"v_lshlrev_b32 v{d}, 16, v{u}")
                    a(f"v_mul_f32 v{d}, v{d}, v{DS+ch}")
            a("s_waitcnt lgkmcnt(0)")
            for j in range(R):
                for ch in range(6):
                    d = S + 8 * j + ch; y = Y + 4 * ch + j
                    a(f"v_fmac_f32 v{y}, v9, v{O+4*ch+j}")
                    a(f"v_cvt_pk_bf16_f32 v{d}, v{y}, v{d}")
                    a(f"v_lshlrev_b32 v{y}, 16, v{d}"); a(f"v_and_b32 v{d}, 0xffff0000, v{d}")
                    a(f"v_add_f32 v{d}, v{d}, v{y}")
                for ch in range(0, 6, 2):
                    d = S + 8 * j + ch
                    a(f"v_cvt_pk_bf16_f32 v{d+1}, v{d}, v{d+1}")
                    a(f"v_lshlrev_b32 v{d}, 16, v{d+1}"); a(f"v_and_b32 v{d+1}, 0xffff0000, v{d+1}")
                Lm, Le = a.newlabel("L_mid"), a.newlabel("L_ste")
                a(f"s_cmp_eq_u32 s{sMID}, 1"); a(f"s_cbranch_scc1 {Lm}")
                for par in range(2):
                    a(f"s_mov_b64 vcc, s[{74+2*par}:{75+2*par}]")
                    T_ = 176 + 8 * j + 4 * par
                    for k in range(3):
                        own, oth = S + 8 * j + 3 * par + k, S + 8 * j + 3 * (1 - par) + k
                        a(f"v_cndmask_b32_dpp v{T_+k}, v{oth}, v{own}, vcc quad_perm:[1,0,3,2] row_mask:0xf bank_mask:0xf")
                    a(f"s_add_u32 s{sT1}, s{sT0}, {18432*j + 4608*par}")
                    if c.skip_a_store: continue
                    a(f"buffer_store_dwordx3 {vr(T_,3)}, v4, s[{sOS}:{sOS+3}], s{sT1} offen{c.out_flags}")
                a(f"s_branch {Le}")
                a.label(Lm)
                a(f"s_add_u32 s{sT1}, s{sT0}, {18432*j}")
                if not c.skip_a_store: a(f"buffer_store_dwordx4 {vr(S+8*j,4)}, v12, s[{sOS}:{sOS+3}], s{sT1} offen{c.out_flags}")
                a.label(Le)

        Lh0, Lh1, Lhe, Lce = a.newlabel("L_h0"), a.newlabel("L_h1"), a.newlabel("L_he"), a.newlabel("L_ce")
        a("s_cmp_ge_u32 s3, 4"); a(f"s_cbranch_scc1 {Lh0}")
        FLG = ST + 8 * SW
        def signal(val):
            def f(lg=None):
                a(f"v_mov_b32 v45, {val}"); a("ds_write_b32 v38, v45")
                if lg is not None: lg.append(("w",))
            return f
        def await_(vf, vh):
            L, Lo = a.newlabel("L_aw"), a.newlabel("L_awok")
            a(f"s_mov_b32 s{sPASS}, {c.spin_max}")
            a.label(L)
            a("ds_read_b128 v[2:5], v39"); a("ds_read_b128 v[6:9], v39 offset:16")
            a("s_waitcnt lgkmcnt(0)")
            a("v_min3_u32 v2, v2, v3, v4"); a("v_min3_u32 v6, v6, v7, v8"); a("v_min_u32 v2, v2, v5"); a("v_min_u32 v6, v6, v9")
            a(f"v_cmp_gt_u32 vcc, {vf}, v2"); a(f"v_cmp_gt_u32 s[6:7], {vh}, v6"); a("s_or_b64 vcc, vcc, s[6:7]")
            a(f"s_cbranch_vccz {Lo}")
            a("s_sleep 1")
            a(f"s_sub_u32 s{sPASS}, s{sPASS}, 1"); a(f"s_cbranch_scc0 {L}")
            a.label(Lo)
        def rec_combine(its):
            r = []
            combine(its, a=r.append)
            return r
        a(f"s_lshl_b32 s{sT0}, s3, 2"); a(f"s_add_u32 s{sT0}, s{sT0}, {FLG}"); a(f"v_mov_b32 v38, s{sT0}")
        a("s_waitcnt vmcnt(0)")
        a("s_barrier")
        self.stamp(4)
        if c.f_skip:
            signal(2)()
        elif c.f_whole:
            conv([0, 1, 2, 3]); self.stamp(8); combine([0, 1, 2, 3]); signal(2)()
        else:
            if c.f_prio: a("s_setprio 2")
            conv([0, 1])
            if c.f_prio == 1: a("s_setprio 0")
            def sig1(lg):
                signal(1)(lg)
                if c.f_prio == 2: a("s_setprio 0")
            conv([2, 3], fill=rec_combine([0, 1]), after=sig1)
            self.stamp(8)
            combine([2, 3])
        a(f"s_branch {Lce}")
        a.label(Lh0)
        self.stamp(4)
        a(f"s_lshl_b32 s{sT0}, s3, 2"); a(f"s_add_u32 s{sT0}, s{sT0}, {FLG}"); a(f"v_mov_b32 v38, s{sT0}"); a(f"v_mov_b32 v39, {FLG}")
        if c.h_skip: a(f"s_branch {Lhe}")
        a(f"s_cmp_eq_u32 s{sMID}, 1"); a(f"s_cbranch_scc1 {Lhe}")
        a("s_bitcmp1_b32 s3, 0"); a(f"s_cbranch_scc1 {Lh1}")
        conv([0, 3]); combine([0, 3]); a(f"s_branch {Lhe}")
        a.label(Lh1)
        conv([1, 2]); combine([1, 2])
        a.label(Lhe)
        signal(1)()
        if c.a_prio: a("s_setprio 0")
        self.stamp(8)
        a("v_and_b32 v13, 255, v0")
        a("s_waitcnt vmcnt(0)")
        if not c.no_epi1:
            await_(1, 1)
            epilogue(4, 0, 13)
            if c.wbl2 & 1:
                Lq = a.newlabel("L_nowb")
                a(f"s_cmp_lg_u32 s{sE}, 4"); a(f"s_cbranch_scc1 {Lq}")
                a("buffer_wbl2 sc1")
                a.label(Lq)
        a.label(Lce)
        self.stamp(5)
        a("s_waitcnt lgkmcnt(0)")
        a("s_barrier")
        self.stamp(6)
        epilogue(2, 1024, 0)
        self.stamp(7)
        if c.wbl2 & 2:
            Lq = a.newlabel("L_nowb")
            a(f"s_cmp_lg_u32 s{sE}, 5"); a(f"s_cbranch_scc1 {Lq}")
            a("s_waitcnt vmcnt(0)"); a("buffer_wbl2 sc1")
            a.label(Lq)
        if c.stamps and c.endwait: a("s_waitcnt vmcnt(0)"); self.stamp(1)
        if c.stamps: self.store_stamps(9, sWS)
        self.lag(c.lag_a)
        self.span_end(9, [2, 3, 4, 8, 5, 6])
        a.label("L_exit")
        a("s_endpgm")

    def build(self):
        self.prologue(); self.roleB(); self.roleA()
        body = self.a.finalize()
        ref = open(f"cdna_kernels/{NAME}.s.ref").read()
        head = ref[:ref.index("; @launch")]
        return head + f"""; @launch grid=({GRID},1,1) block=(512,1,1) lds={LDS_TOTAL}
{DOC}.amdgcn_target "amdgcn-amd-amdhsa--gfx950"
.text
.globl {KN}
.p2align 8
.type {KN},@function
{KN}:
{body}
L_codeend:
.if (L_codeend - {KN}) > {self.c.np_kb*1024}
.error "code larger than prefetch window"
.endif
.fill ({self.c.np_kb*1024} - (L_codeend - {KN})) / 4, 4, 0xbf810000
.section .rodata,"a"
.p2align 6
.amdhsa_kernel {KN}
  .amdhsa_next_free_vgpr 256
  .amdhsa_next_free_sgpr 102
  .amdhsa_accum_offset 256
  .amdhsa_group_segment_fixed_size 0
  .amdhsa_kernarg_size 168
  .amdhsa_user_sgpr_count 2
  .amdhsa_user_sgpr_kernarg_segment_ptr 1
  .amdhsa_system_sgpr_workgroup_id_x 1
.end_amdhsa_kernel
"""

if __name__ == "__main__":
    cfg = Cfg()
    out = f"cdna_kernels/{NAME}.s"
    for arg in sys.argv[1:]:
        if arg.startswith("-o="): out = arg[3:]
        else:
            k, v = arg.split("="); setattr(cfg, k, eval(v))
    open(out, "w").write(Gen(cfg).build())
    import subprocess
    r = subprocess.run(["clang", "-x", "assembler", "-target", "amdgcn-amd-amdhsa", "-mcpu=gfx950", "-c", out, "-o", "chk.o"], capture_output=True, text=True)
    print("wrote", out, "OK" if r.returncode == 0 else "ASM ERROR\n" + r.stderr[:2000])
```
